```python
import torch

def _softmax(x, axis=-1):
    return torch.softmax(x, dim=axis)
def _gelu(x):
    return torch.nn.functional.gelu(x, approximate="tanh")
def _silu(x):
    return torch.nn.functional.silu(x)
def _sigmoid(x):
    return torch.sigmoid(x)
def _layernorm(x, axis=-1, eps=1e-5):
    m = x.mean(dim=axis, keepdim=True)
    v = x.var(dim=axis, keepdim=True, unbiased=False)
    return (x - m) / torch.sqrt(v + eps)
def _scatter_add(tgt, idx, src, axis=0):
    return tgt.clone().index_add_(axis, idx, src)
def _segment_sum(src, seg, n):
    out = torch.zeros((n,) + src.shape[1:], dtype=src.dtype)
    return out.index_add_(0, seg, src)
def _pad(x, pw):
    flat = tuple(v for pair in reversed(pw) for v in pair)
    return torch.nn.functional.pad(x, flat)

kernel_name = 'concat_heads__mha_block_cached__gqa_block_cached__near_ridge'

def setup_inputs():

    _w = (lambda a: (lambda t: t.to(torch.bfloat16) if t.is_floating_point() else t)(torch.as_tensor(a)))
    def _A_setup():
        B, Sq, D = 8, 96, 1024
        H, Sk, Dh = 32, 512, 128
        return {
            "x": _w((lambda *s: torch.randn(*s, dtype=torch.bfloat16) * 0.8)(B, Sq, D)),
            "k_cache": _w((lambda *s: torch.randn(*s, dtype=torch.bfloat16) * 0.8)(B, H, Sk, Dh)),
            "v_cache": _w((lambda *s: torch.randn(*s, dtype=torch.bfloat16) * 0.05)(B, H, Sk, Dh)),
            "wq": _w((lambda *s: torch.randn(*s, dtype=torch.bfloat16) * 0.8)(D, H * Dh) * (D ** -0.5)),
            "wo": _w((lambda *s: torch.randn(*s, dtype=torch.bfloat16) * 0.05)(H * Dh, D) * ((H * Dh) ** -0.5)),
        }
    _A_in = _A_setup()

    def _B_setup():
        B, Sq, D = 8, 96, 1024
        Hq, Hkv, Sk, Dh = 32, 32, 512, 128
        assert Hq % Hkv == 0, (Hq, Hkv)
        return {
            "x": _w((lambda *s: torch.randn(*s, dtype=torch.bfloat16) * 0.8)(B, Sq, D)),
            "k_cache": _w((lambda *s: torch.randn(*s, dtype=torch.bfloat16) * 0.8)(B, Hkv, Sk, Dh)),
            "v_cache": _w((lambda *s: torch.randn(*s, dtype=torch.bfloat16) * 0.05)(B, Hkv, Sk, Dh)),
            "wq": _w((lambda *s: torch.randn(*s, dtype=torch.bfloat16) * 0.8)(D, Hq * Dh) * (D ** -0.5)),
            "wo": _w((lambda *s: torch.randn(*s, dtype=torch.bfloat16) * 0.05)(Hq * Dh, D) * ((Hq * Dh) ** -0.5)),
        }
    _B_in = _B_setup()

    return {
        "A_x": _A_in["x"],
        "A_k_cache": _A_in["k_cache"],
        "A_v_cache": _A_in["v_cache"],
        "A_wq": _A_in["wq"],
        "A_wo": _A_in["wo"],
        "B_x": _B_in["x"],
        "B_k_cache": _B_in["k_cache"],
        "B_v_cache": _B_in["v_cache"],
        "B_wq": _B_in["wq"],
        "B_wo": _B_in["wo"],
    }

def reference(A_x, A_k_cache, A_v_cache, A_wq, A_wo, B_x, B_k_cache, B_v_cache, B_wq, B_wo):
    def _A_ref(x, k_cache, v_cache, wq, wo):
        B, Sq, D = x.shape
        H, Dh = 32, 128
        q = (lambda x, *d: x.permute(*d))((x @ wq).reshape(B, Sq, H, Dh), 0, 2, 1, 3)
        scores = torch.einsum("bhqd,bhkd->bhqk", q, k_cache) * (Dh ** -0.5)
        p = _softmax(scores, axis=-1)
        o = torch.einsum("bhqk,bhkd->bhqd", p, v_cache)
        return (lambda x, *d: x.permute(*d))(o, 0, 2, 1, 3).reshape(B, Sq, H * Dh) @ wo

    def _B_ref(x, k_cache, v_cache, wq, wo):
        B, Sq, D = x.shape
        Hq, Dh = 32, 128
        Hkv = k_cache.shape[1]
        rep = Hq // Hkv
        q = (lambda x, *d: x.permute(*d))((x @ wq).reshape(B, Sq, Hq, Dh), 0, 2, 1, 3)
        k = (lambda x, n, axis: torch.repeat_interleave(x, n, dim=axis))(k_cache, rep, axis=1)
        v = (lambda x, n, axis: torch.repeat_interleave(x, n, dim=axis))(v_cache, rep, axis=1)
        scores = torch.einsum("bhqd,bhkd->bhqk", q, k) * (Dh ** -0.5)
        p = _softmax(scores, axis=-1)
        o = torch.einsum("bhqk,bhkd->bhqd", p, v)
        return (lambda x, *d: x.permute(*d))(o, 0, 2, 1, 3).reshape(B, Sq, Hq * Dh) @ wo

    a = _A_ref(A_x, A_k_cache, A_v_cache, A_wq, A_wo)
    b = _B_ref(B_x, B_k_cache, B_v_cache, B_wq, B_wo)
    return torch.concatenate([a, b], axis=-1)
```

```python
import re, copy

def v(n, cnt=1):
    return f"v{n}" if cnt == 1 else f"v[{n}:{n+cnt-1}]"
def s(n, cnt=1):
    return f"s{n}" if cnt == 1 else f"s[{n}:{n+cnt-1}]"

_REG = re.compile(r"\b([vsa])(?:(\d+)|\[(\d+):(\d+)\])")
def regs_of(op):
    out = set()
    for m in _REG.finditer(op):
        k = m.group(1)
        if m.group(2) is not None:
            out.add(k + m.group(2))
        else:
            for i in range(int(m.group(3)), int(m.group(4)) + 1):
                out.add(k + str(i))
    if re.search(r"\bvcc\b", op): out.add("vcc")
    if re.search(r"\bm0\b", op): out.add("m0")
    if re.search(r"\bexec\b", op): out.add("exec")
    return out

TRANS = ("v_exp_f32", "v_rcp_f32", "v_log_f32", "v_rsq_f32", "v_sqrt_f32")

class Ins:
    __slots__ = ("text", "kind", "reads", "writes", "srcc", "passes", "states")
    def __init__(self, text):
        self.text = text
        mn, _, rest = text.partition(" ")
        ops = [o.strip() for o in rest.split(",")] if rest else []
        self.srcc = set(); self.passes = 0; self.states = 1
        R = lambda xs: set().union(*[regs_of(o) for o in xs]) if xs else set()
        if mn.startswith("v_mfma"):
            self.kind = "mfma"; self.writes = R(ops[:1]); self.reads = R(ops[1:]); self.srcc = R(ops[3:4])
            self.passes = 4 if "16x16" in mn else 8
        elif mn.startswith("v_permlane") and "swap" in mn:
            self.kind = "perm"; self.writes = R(ops); self.reads = R(ops)
        elif mn.startswith("v_readfirstlane") or mn.startswith("v_readlane"):
            self.kind = "readlane"; self.writes = R(ops[:1]); self.reads = R(ops[1:])
        elif mn.startswith("v_cmp"):
            self.kind = "valu"; self.writes = R(ops[:1]); self.reads = R(ops[1:])
        elif mn.startswith("v_"):
            self.kind = "trans" if mn.split("_e")[0] in TRANS or mn in TRANS else "valu"
            self.writes = R(ops[:1]); self.reads = R(ops[1:])
            if mn.startswith("v_fmac") or mn.startswith("v_pk_fmac"): self.reads |= self.writes
        elif mn.startswith("ds_read"):
            self.kind = "dsr"; self.writes = R(ops[:1]); self.reads = R(ops[1:])
        elif mn.startswith("ds_"):
            self.kind = "dsw"; self.writes = set(); self.reads = R(ops)
        elif mn.startswith("buffer_load") or mn.startswith("global_load"):
            if text.rstrip().endswith(" lds") or "_lds_" in mn:
                self.kind = "dma"; self.writes = set(); self.reads = R(ops) | {"m0"}
            else:
                self.kind = "vload"; self.writes = R(ops[:1]); self.reads = R(ops[1:])
        elif mn.startswith("buffer_store") or mn.startswith("global_store") or "atomic" in mn:
            self.kind = "vstore"; self.writes = set(); self.reads = R(ops)
        elif mn == "s_nop":
            self.kind = "nop"; self.writes = set(); self.reads = set(); self.states = int(ops[0]) + 1
        elif mn in ("s_waitcnt", "s_barrier", "s_endpgm", "s_setprio", "s_sleep") or mn.startswith("s_branch") or mn.startswith("s_cbranch") or mn.startswith("buffer_inv") or mn.startswith("buffer_wbl2"):
            self.kind = "ctl"; self.writes = set(); self.reads = set()
        elif mn.startswith("s_cmp") or mn.startswith("s_bitcmp"):
            self.kind = "salu"; self.writes = set(); self.reads = R(ops)
        elif mn.startswith("s_"):
            self.kind = "salu"; self.writes = R(ops[:1]); self.reads = R(ops[1:])
        else:
            raise ValueError("unknown instruction: " + text)

VALU_LIKE = ("valu", "trans", "perm", "readlane")
MEM = ("dsr", "dsw", "dma", "vload", "vstore")

def need_states(p, c):
    n = 0
    pw_v = {r for r in p.writes if r[0] in "va" and r != "vcc"}
    pw_s = p.writes - pw_v
    if p.kind in VALU_LIKE:
        if c.kind == "mfma" and pw_v & c.reads: n = max(n, 2)
        if c.kind == "perm" and pw_v & c.reads: n = max(n, 2)
        if c.kind == "readlane" and pw_v & c.reads: n = max(n, 1)
        if p.kind == "trans" and c.kind in VALU_LIKE and c.kind != "trans" and pw_v & c.reads: n = max(n, 1)
        if p.kind == "trans" and c.kind == "trans" and pw_v & c.reads: n = max(n, 1)
        if pw_s & c.reads:
            if c.kind in ("dma", "vload", "vstore"): n = max(n, 5)
            elif c.kind in VALU_LIKE or c.kind == "mfma": n = max(n, 4 if c.kind == "readlane" else 2)
            elif c.kind == "salu": n = max(n, 1)
    if p.kind == "salu" and "m0" in p.writes and c.kind == "dma": n = max(n, 1)
    if p.kind == "mfma":
        full = {4: 8, 8: 12}[p.passes]
        if c.kind == "mfma":
            ab = c.reads - c.srcc
            if p.writes & ab: n = max(n, full)
            if p.writes & c.srcc and not (p.writes == c.srcc and p.passes == c.passes): n = max(n, full - 2)
            if p.writes & c.writes and not (p.writes & c.srcc): n = max(n, full - 2) if p.writes != c.writes else n
        elif c.kind in VALU_LIKE or c.kind in MEM:
            if p.writes & (c.reads | c.writes): n = max(n, full)
            if c.kind in VALU_LIKE and p.srcc & c.writes: n = max(n, {4: 3, 8: 7}[p.passes])
    if p.kind == "vstore" and ("x4" in p.text or "x3" in p.text):
        if (c.kind in VALU_LIKE or c.kind in ("mfma", "dsr", "vload")) and p.reads & c.writes: n = max(n, 2)
    return n

class Emitter:
    def __init__(self):
        self.lines = []
        self.hist = []
        self.lds = []
        self.nops = 0
    def state(self):
        return (list(self.hist), [set(x) for x in self.lds])
    def set_state(self, st):
        self.hist = list(st[0]); self.lds = [set(x) for x in st[1]]
    def raw(self, text):
        self.lines.append(text)
    def label(self, name):
        self.lines.append(name + ":")
    def comment(self, text):
        self.lines.append("    ; " + text)
    def _push(self, ins):
        self.lines.append("    " + ins.text)
        self.hist.append(ins)
        if len(self.hist) > 24: self.hist.pop(0)
    def wait_lgkm(self, n):
        self._push(Ins(f"s_waitcnt lgkmcnt({n})"))
        self.lds = self.lds[len(self.lds) - n:] if n else []
    def __call__(self, text):
        for t in text.strip().split("\n"):
            t = t.strip()
            if t: self._one(t)
    def _one(self, text):
        ins = Ins(text)
        m = re.search(r"lgkmcnt\((\d+)\)", text) if text.startswith("s_waitcnt") else None
        if m:
            n = int(m.group(1))
            if n < len(self.lds): self.lds = self.lds[len(self.lds) - n:] if n else []
        touched = ins.reads | ins.writes
        last = -1
        for i, d in enumerate(self.lds):
            if d & touched: last = i
        if last >= 0:
            self.wait_lgkm(len(self.lds) - 1 - last)
        if ins.kind in ("dsr", "dsw") and len(self.lds) >= 15:
            self.wait_lgkm(14)
        dist = 0; need = 0
        for p in reversed(self.hist):
            need = max(need, need_states(p, ins) - dist)
            dist += p.states
            if dist >= 20: break
        if need > 0:
            self._push(Ins(f"s_nop {need-1}")); self.nops += need
        self._push(ins)
        if ins.kind == "dsr": self.lds.append(set(ins.writes))
        elif ins.kind == "dsw": self.lds.append(set())
    def loop(self, name, body, tail):
        st0 = self.state(); n0 = len(self.lines)
        body(); self(tail)
        t1 = self.lines[n0:]; del self.lines[n0:]
        body(); self(tail)
        t2 = self.lines[n0:]; del self.lines[n0:]
        if t1 != t2:
            import difflib
            print("\n".join(difflib.unified_diff(t1, t2, lineterm="", n=2)))
            raise RuntimeError("loop body differs between entry and steady state: " + name)
        self.label(name)
        self.lines.extend(t2)
    def text(self):
        return "\n".join(self.lines) + "\n"

def interleave(E, mfmas, fillers):
    for t in fillers.get(-1, []): E(t)
    for i, m in enumerate(mfmas):
        E(m)
        for t in fillers.get(i, []): E(t)
```

```python
import math, struct, sys
from emit import *

NAME = "concat_heads__mha_block_cached__gqa_block_cached__near_ridge"
SLOT = 40960
WS_O = 0
WS_P = 16 << 20
WS_T = 64 << 20
C_SCALE = struct.unpack("<I", struct.pack("<f", math.log2(math.e) / math.sqrt(128.0)))[0]

SRD_X, SRD_W, SRD_K, SRD_V, SRD_S = 32, 36, 40, 44, 48
S_WAVE, S_BR, S_HG, S_J7, S_P = 52, 53, 54, 55, 56
S_T0, S_T1, S_T2, S_CNT, S_SLOT, S_KC, S_WB, S_XB, S_DELTA, S_KVB = 57, 58, 59, 60, 61, 62, 63, 64, 65, 66
S_C = 68
S_TS = 70

V_LANE, V_T0, V_T1, V_T2, V_T3 = 1, 2, 3, 30, 31
V_A, V_B, V_K = 4, 12, 14
V_M, V_L, V_AL = 18, 22, 28
V_F, V_ACC, V_Q, V_S = 32, 64, 160, 208

def acc(t, qt): return V_ACC + (t * 3 + qt) * 4
def frag(n): return V_F + (n % 8) * 4
def sreg(kt, qt): return V_S + (kt * 3 + qt) * 4
def qreg(qt, j): return V_Q + (qt * 4 + j) * 4
def breg(st, qt): return V_S + (st * 3 + qt) * 4
MF = "v_mfma_f32_16x16x32_bf16"

class Cfg:
    kv_flag = " nt"; w_flag = ""; x_flag = ""; o_st = ""; o_ld = ""; wo_flag = ""; p_st = ""; p_ld = ""; out_st = ""
    rot = True; stamps = False
    def __init__(self, **kw): self.__dict__.update(kw)

def srd(E, d, base, nbytes):
    E(f"s_mov_b32 {s(d)}, {s(base)}\ns_and_b32 {s(d+1)}, {s(base+1)}, 0xffff\ns_mov_b32 {s(d+2)}, {nbytes}\ns_mov_b32 {s(d+3)}, 0x20000")

def prologue(E, name, nwg):
    E.raw(f".globl {name}\n.p2align 8\n.type {name},@function\n{name}:")
    E(f"s_cmp_ge_u32 s2, {nwg}\ns_cbranch_scc1 L_end_{name}")
    E("s_load_dwordx16 s[4:19], s[0:1], 0\ns_load_dwordx8 s[20:27], s[0:1], 64\ns_load_dwordx2 s[28:29], s[0:1], 96")
    E(f"v_lshrrev_b32 {v(V_T0)}, 6, v0\nv_and_b32 {v(V_LANE)}, 63, v0\nv_readfirstlane_b32 {s(S_WAVE)}, {v(V_T0)}")
    E(f"s_bfe_u32 {s(S_BR)}, s2, 0x10002\ns_and_b32 {s(S_HG)}, s2, 3\ns_bfe_u32 {s(S_J7)}, s2, 0x30003\ns_lshr_b32 {s(S_P)}, s2, 6")
    E("s_waitcnt lgkmcnt(0)")
    E(f"s_cmp_eq_u32 {s(S_BR)}, 0")
    for i in range(5):
        E(f"s_cselect_b64 {s(4+2*i,2)}, {s(4+2*i,2)}, {s(14+2*i,2)}")

def stamp(E, cfg, i):
    if cfg.stamps:
        E(f"s_memrealtime {s(S_TS+2*i,2)}")

def stamps_out(E, cfg, kidx, n):
    if not cfg.stamps: return
    E("s_waitcnt lgkmcnt(0)")
    E(f"s_lshl_b32 {s(S_T0)}, s2, 3\ns_add_u32 {s(S_T0)}, {s(S_T0)}, {s(S_WAVE)}\ns_lshl_b32 {s(S_T0)}, {s(S_T0)}, 7\ns_add_u32 {s(S_T0)}, {s(S_T0)}, {WS_T + kidx*(1<<20)}")
    E(f"v_mov_b32 v2, 0")
    for i in range(n):
        E(f"v_mov_b32 v4, {s(S_TS+2*i)}\nv_mov_b32 v5, {s(S_TS+2*i+1)}")
        E(f"buffer_store_dwordx2 v[4:5], v2, {s(SRD_S,4)}, {s(S_T0)} offen offset:{8*i}")
        E("s_nop 1")

def next_slot(E):
    E(f"s_add_u32 {s(S_SLOT)}, {s(S_SLOT)}, {SLOT}\ns_cmp_eq_u32 {s(S_SLOT)}, {4*SLOT}\ns_cselect_b32 {s(S_SLOT)}, 0, {s(S_SLOT)}")

LW, LX, LK, LV = 4, 8, 14, 18

def loader_setup_gemm(E, at, ldw, qproj):
    L, T0, T1, T2 = v(V_LANE), v(V_T0), v(V_T1), v(V_T2)
    E(f"v_lshrrev_b32 {T0}, 4, {L}\nv_and_b32 {T1}, 15, {L}")
    if qproj:
        E(f"s_lshr_b32 {s(S_T0)}, {s(S_T2)}, 1\ns_lshl_b32 {s(S_T0)}, {s(S_T0)}, 5\ns_and_b32 {s(S_T1)}, {s(S_T2)}, 1\ns_lshl_b32 {s(S_T1)}, {s(S_T1)}, 2\ns_add_u32 {s(S_T0)}, {s(S_T0)}, {s(S_T1)}")
        step = 8
    else:
        E(f"s_lshl_b32 {s(S_T0)}, {s(S_T2)}, 4")
        step = 4
    sh = int(math.log2(ldw))
    for j in range(4):
        E(f"v_or_b32 {T2}, {(j&1)<<2}, {T0}\nv_lshlrev_b32 {T2}, 1, {T2}\nv_xor_b32 {T2}, {T2}, {T1}\nv_lshlrev_b32 {T2}, 4, {T2}")
        E(f"v_add_u32 {v(LW+j)}, {s(S_T0)}, {T0}\nv_lshl_add_u32 {v(LW+j)}, {v(LW+j)}, {sh}, {T2}")
        if j: E(f"v_add_u32 {v(LW+j)}, {step*j*ldw - 1024*j}, {v(LW+j)}")
    if qproj:
        E(f"s_mul_i32 {s(S_T0)}, {s(S_T2)}, 48")
        for j in range(6):
            E(f"v_add_u32 {T2}, {4*j}, {T0}\nv_xor_b32 {T2}, {T2}, {L}\nv_and_b32 {T2}, 7, {T2}\nv_lshlrev_b32 {T2}, 4, {T2}")
            E(f"v_lshrrev_b32 {v(LX+j)}, 3, {L}\nv_add_u32 {v(LX+j)}, {s(S_T0)}, {v(LX+j)}\nv_lshl_add_u32 {v(LX+j)}, {v(LX+j)}, 11, {T2}")
            if j: E(f"v_add_u32 {v(LX+j)}, {8*j*2048 - 1024*(j&3)}, {v(LX+j)}")
    else:
        for j in range(6):
            E(f"v_lshlrev_b32 {v(LX+j)}, 4, {L}")
            if j >= 4: E(f"v_add_u32 {v(LX+j)}, 4096, {v(LX+j)}")

def issue_gemm_stage(E, ldw, xstep, srdx, wf, xf):
    E(f"s_mul_i32 {s(S_T0)}, {s(S_KC)}, {64*ldw}\ns_add_u32 {s(S_T0)}, {s(S_T0)}, {s(S_WB)}")
    E(f"s_lshl_b32 {s(S_T1)}, {s(S_T2)}, 12\ns_add_u32 m0, {s(S_SLOT)}, {s(S_T1)}")
    E(f"s_mul_i32 {s(S_T1)}, {s(S_KC)}, {xstep}")
    for j in range(4):
        E(f"buffer_load_dwordx4 {v(LW+j)}, {s(SRD_W,4)}, {s(S_T0)} offen offset:{1024*j}{wf} lds")
    E(f"s_add_u32 {s(S_T1)}, {s(S_T1)}, {s(S_XB)}")
    E(f"s_mul_i32 {s(S_T0)}, {s(S_T2)}, 6144\ns_add_u32 {s(S_T0)}, {s(S_T0)}, {s(S_SLOT)}\ns_add_u32 m0, {s(S_T0)}, 16384")
    for j in range(6):
        if j == 4: E(f"s_add_u32 m0, {s(S_T0)}, {16384+4096}")
        E(f"buffer_load_dwordx4 {v(LX+j)}, {s(srdx,4)}, {s(S_T1)} offen offset:{1024*(j&3)}{xf} lds")
    E(f"s_add_u32 {s(S_KC)}, {s(S_KC)}, 1\ns_and_b32 {s(S_KC)}, {s(S_KC)}, 15")
    next_slot(E)

def issue_kv_stage(E, cfg, isv):
    E(f"s_lshl_b32 {s(S_T0)}, {s(S_T2)}, 13\ns_add_u32 {s(S_T0)}, {s(S_T0)}, {s(S_SLOT)}\ns_mov_b32 m0, {s(S_T0)}")
    E(f"s_add_u32 {s(S_T1)}, {s(S_KVB)}, 4096")
    for j in range(8):
        if j == 4: E(f"s_add_u32 m0, {s(S_T0)}, 4096")
        r = LV + (j & 1) if isv else LK + (j & 3)
        E(f"buffer_load_dwordx4 {v(r)}, {s(SRD_V if isv else SRD_K,4)}, {s(S_KVB if j < 4 else S_T1)} offen offset:{1024*(j&3)}{cfg.kv_flag} lds")
    if isv: E(f"s_add_u32 {s(S_KVB)}, {s(S_KVB)}, 16384")
    next_slot(E)

def rot_init(E, cfg):
    if cfg.rot:
        E(f"s_lshl_b32 {s(S_KC)}, {s(S_P)}, 1\ns_add_u32 {s(S_KC)}, {s(S_KC)}, {s(S_J7)}\ns_lshl_b32 {s(S_KC)}, {s(S_KC)}, 1\ns_and_b32 {s(S_KC)}, {s(S_KC)}, 15")
    else:
        E(f"s_mov_b32 {s(S_KC)}, 0")

def a_addr_init(E, base_s):
    L, T0, T1, T2 = v(V_LANE), v(V_T0), v(V_T1), v(V_T2)
    E(f"v_lshrrev_b32 {T0}, 2, {L}\nv_and_b32 {T1}, 7, {T0}\nv_lshlrev_b32 {T1}, 5, {T1}\nv_lshl_add_u32 {T1}, {T0}, 8, {T1}")
    E(f"v_and_b32 {T2}, 3, {L}\nv_lshl_add_u32 {T1}, {T2}, 3, {T1}\nv_add_u32 {v(V_A)}, {base_s}, {T1}")
    for t in range(1, 8):
        E(f"v_xor_b32 {v(V_A+t)}, {t<<5}, {v(V_A)}")

def rd_a(n):
    st, t = (n >> 3) & 1, n & 7
    return [f"ds_read_b64_tr_b16 {v(frag(n),2)}, {v(V_A+t)} offset:{st*8192}",
            f"ds_read_b64_tr_b16 {v(frag(n)+2,2)}, {v(V_A+t)} offset:{st*8192+4096}"]
def rd_b(st):
    return [f"ds_read_b128 {v(breg(st,qt),4)}, {v(V_B+st)} offset:{qt*2048}" for qt in range(3)]
def rd_k(n):
    return [f"ds_read_b128 {v(frag(n),4)}, {v(V_K+(n&3))} offset:{(n>>2)*4096}"]

def spread(fill, start, items, per):
    i = start
    for k in range(0, len(items), per):
        fill.setdefault(i, []).extend(items[k:k+per]); i += 1

def gemm(E, name):
    E("s_barrier")
    pre = rd_b(0) + sum([rd_a(n) for n in range(6)], [])
    for t in pre: E(t)
    E(f"s_mov_b32 {s(S_CNT)}, 0\ns_mov_b32 {s(S_SLOT)}, 0")
    def body():
        mf = [f"{MF} {v(acc(n&7,qt),4)}, {v(frag(n),4)}, {v(breg(n>>3,qt),4)}, {v(acc(n&7,qt),4)}" for n in range(16) for qt in range(3)]
        fill = {}
        for n in range(10):
            a = rd_a(n + 6)
            fill.setdefault(3*n, []).append(a[0]); fill.setdefault(3*n+1, []).append(a[1])
        for k, t in enumerate(rd_b(1)): fill.setdefault(3*k+2, []).append(t)
        fill.setdefault(11, []).extend([f"s_add_u32 {s(S_CNT)}, {s(S_CNT)}, 1", f"s_and_b32 {s(S_T0)}, {s(S_CNT)}, 3"])
        fill.setdefault(14, []).extend([f"s_cmp_eq_u32 {s(S_T0)}, 0", f"s_cselect_b32 {s(S_DELTA)}, {(-3*SLOT) & 0xffffffff}, {s(S_T1)}"])
        upd = [f"v_add_u32 {v(r)}, {s(S_DELTA)}, {v(r)}" for r in [V_B, V_B+1] + [V_A+t for t in range(8)]]
        spread(fill, 29, upd, 2)
        fill.setdefault(35, []).extend(["s_waitcnt lgkmcnt(0)", "s_barrier"])
        fill[35].extend(pre[:3])
        spread(fill, 36, pre[3:], 1)
        interleave(E, mf, fill)
    E(f"s_mov_b32 {s(S_T1)}, {SLOT}")
    E.loop(f"L_gemm_{name}", body, f"s_cmp_lt_u32 {s(S_CNT)}, 16\ns_cbranch_scc1 L_gemm_{name}")
    E("s_waitcnt lgkmcnt(0)")

def zero_acc(E):
    for r in range(V_ACC, V_ACC + 96, 2): E(f"v_mov_b64 {v(r,2)}, 0")

def xlane(E, op, regs):
    tmp = [V_T0, V_T1, V_T2]
    for sw in ("v_permlane32_swap_b32", "v_permlane16_swap_b32"):
        for r, t in zip(regs, tmp): E(f"v_mov_b32 {v(t)}, {v(r)}")
        for r, t in zip(regs, tmp): E(f"{sw} {v(t)}, {v(r)}")
        for r, t in zip(regs, tmp): E(f"{op} {v(r)}, {v(r)}, {v(t)}")

def attention(E, cfg):
    L, T0, T1, T2 = v(V_LANE), v(V_T0), v(V_T1), v(V_T2)
    for qt in range(3):
        for j in range(4):
            q = qreg(qt, j)
            for e in range(2):
                a = acc(2*j+e, qt)
                E(f"v_cvt_pk_bf16_f32 {v(q+2*e)}, {v(a)}, {v(a+1)}\nv_cvt_pk_bf16_f32 {v(q+2*e+1)}, {v(a+2)}, {v(a+3)}")
    E(f"s_lshr_b32 {s(S_T0)}, {s(S_WAVE)}, 1\ns_lshl_b32 {s(S_T0)}, {s(S_T0)}, 14")
    E(f"v_lshrrev_b32 {T0}, 4, {L}\nv_and_b32 {T1}, 1, {T0}\nv_lshrrev_b32 {T0}, 1, {T0}\nv_lshl_or_b32 {T0}, {T1}, 1, {T0}")
    E(f"v_and_b32 {T1}, 15, {L}\nv_xor_b32 {T0}, {T0}, {T1}\nv_lshlrev_b32 {T0}, 4, {T0}\nv_lshl_add_u32 {T0}, {T1}, 8, {T0}\nv_add_u32 {v(V_K)}, {s(S_T0)}, {T0}")
    for j in range(1, 4): E(f"v_xor_b32 {v(V_K+j)}, {j<<6}, {v(V_K)}")
    prek = sum([rd_k(n) for n in range(6)], [])
    for t in prek: E(t)
    E(f"s_add_u32 {s(S_T0)}, {s(S_T0)}, {SLOT}")
    a_addr_init(E, s(S_T0))
    for qt in range(3):
        for j in range(4):
            q = qreg(qt, j)
            E(f"v_permlane16_swap_b32 {v(q)}, {v(q+2)}\nv_permlane16_swap_b32 {v(q+1)}, {v(q+3)}")
    zero_acc(E)
    for qt in range(3):
        E(f"v_mov_b32 {v(V_M+qt)}, 0xff800000\nv_mov_b64 {v(V_L+2*qt,2)}, 0")
    E(f"s_mov_b32 {s(S_C)}, {C_SCALE}\ns_mov_b32 {s(S_C+1)}, {C_SCALE}")
    E(f"s_mov_b32 {s(S_CNT)}, 0\ns_mov_b32 {s(S_DELTA)}, {2*SLOT}")
    MN = [V_B, V_B+1, V_M+3]
    def body():
        mf = [f"{MF} {v(sreg(n>>2,qt),4)}, {v(frag(n),4)}, {v(qreg(qt,n&3),4)}, {v(sreg(n>>2,qt),4) if n&3 else 0}" for n in range(16) for qt in range(3)]
        fill = {}
        for n in range(10): fill.setdefault(3*n, []).extend(rd_k(n + 6))
        spread(fill, 30, [f"v_add_u32 {v(V_K+j)}, {s(S_DELTA)}, {v(V_K+j)}" for j in range(4)], 1)
        def mx(kt):
            out = []
            for h in range(2):
                for qt in range(3):
                    src = V_M + qt if (kt == 0 and h == 0) else MN[qt]
                    out.append(f"v_max3_f32 {v(MN[qt])}, {v(src)}, {v(sreg(kt,qt)+2*h)}, {v(sreg(kt,qt)+2*h+1)}")
            return out
        for kt in range(3): spread(fill, 12*kt + 17, mx(kt), 1)
        interleave(E, mf, fill)
        for t in mx(3): E(t)
        xlane(E, "v_max_f32", MN)
        for qt in range(3):
            al, mc = V_AL, V_T2
            E(f"v_sub_f32 {v(al)}, {v(V_M+qt)}, {v(MN[qt])}\nv_mul_f32 {v(mc)}, {s(S_C)}, {v(MN[qt])}\nv_mul_f32 {v(al)}, {s(S_C)}, {v(al)}")
            E(f"v_mov_b32 {v(V_M+qt)}, {v(MN[qt])}\nv_exp_f32 {v(MN[qt])}, {v(al)}")
            for kt in range(4):
                for h in range(2):
                    r = sreg(kt, qt) + 2*h
                    E(f"v_pk_fma_f32 {v(r,2)}, {v(r,2)}, {s(S_C,2)}, {v(mc,2)} op_sel_hi:[1,0,0] neg_lo:[0,0,1] neg_hi:[0,0,1]")
            E(f"v_mul_f32 {v(V_L+2*qt)}, {v(V_L+2*qt)}, {v(MN[qt])}\nv_mul_f32 {v(V_L+2*qt+1)}, {v(V_L+2*qt+1)}, {v(MN[qt])}")
            for kt in range(4):
                for i in range(4): E(f"v_exp_f32 {v(sreg(kt,qt)+i)}, {v(sreg(kt,qt)+i)}")
            for kt in range(4):
                for h in range(2):
                    r = sreg(kt, qt) + 2*h
                    E(f"v_pk_add_f32 {v(V_L+2*qt,2)}, {v(V_L+2*qt,2)}, {v(r,2)}")
                    E(f"v_cvt_pk_bf16_f32 {v(sreg(kt&2,qt)+2*(kt&1)+h)}, {v(r)}, {v(r+1)}")
        E("s_waitcnt lgkmcnt(0)\ns_barrier")
        for n in range(6):
            for t in rd_a(n): E(t)
        for qt in range(3):
            E(f"v_mov_b32 {v(V_AL)}, {v(MN[qt])}")
            for t in range(8):
                for h in range(2):
                    r = acc(t, qt) + 2*h
                    E(f"v_pk_mul_f32 {v(r,2)}, {v(r,2)}, {v(V_AL,2)} op_sel_hi:[1,0]")
        mf = [f"{MF} {v(acc(n&7,qt),4)}, {v(frag(n),4)}, {v(sreg(2*(n>>3),qt),4)}, {v(acc(n&7,qt),4)}" for n in range(16) for qt in range(3)]
        fill = {}
        for n in range(10):
            a = rd_a(n + 6)
            fill.setdefault(3*n, []).append(a[0]); fill.setdefault(3*n+1, []).append(a[1])
        spread(fill, 29, [f"v_add_u32 {v(V_A+t)}, {s(S_DELTA)}, {v(V_A+t)}" for t in range(8)], 2)
        fill.setdefault(33, []).extend([f"s_sub_u32 {s(S_DELTA)}, 0, {s(S_DELTA)}", f"s_add_u32 {s(S_CNT)}, {s(S_CNT)}, 1"])
        fill.setdefault(35, []).extend(["s_waitcnt lgkmcnt(0)", "s_barrier"])
        for k, t in enumerate(prek): fill.setdefault(36 + 2*k, []).append(t)
        interleave(E, mf, fill)
    E.loop("L_attn", body, f"s_cmp_lt_u32 {s(S_CNT)}, 8\ns_cbranch_scc1 L_attn")
    E("s_waitcnt lgkmcnt(0)")
    stamp(E, cfg, 3)
    for qt in range(3): E(f"v_add_f32 {v(V_M+qt)}, {v(V_L+2*qt)}, {v(V_L+2*qt+1)}")
    xlane(E, "v_add_f32", [V_M, V_M+1, V_M+2])
    for qt in range(3): E(f"v_rcp_f32 {v(V_L+2*qt)}, {v(V_M+qt)}")
    E(f"s_lshl_b32 {s(S_T0)}, {s(S_BR)}, 2\ns_add_u32 {s(S_T0)}, {s(S_T0)}, {s(S_P)}\ns_lshl_b32 {s(S_T0)}, {s(S_T0)}, 2\ns_add_u32 {s(S_T0)}, {s(S_T0)}, {s(S_WAVE)}")
    E(f"s_lshl_b32 {s(S_T0)}, {s(S_T0)}, 2\ns_add_u32 {s(S_T0)}, {s(S_T0)}, {s(S_HG)}\ns_lshl_b32 {s(S_T0)}, {s(S_T0)}, 3\ns_add_u32 {s(S_T0)}, {s(S_T0)}, {s(S_J7)}")
    E(f"s_mul_i32 {s(S_T0)}, {s(S_T0)}, 12288\ns_add_u32 {s(S_T0)}, {s(S_T0)}, {WS_O}")
    E(f"v_lshlrev_b32 {T0}, 4, {L}")
    for jp in range(2):
        for qt in range(3):
            for jj in range(2):
                j = 2*jp + jj; d = V_S + ((jp*3+qt)*2+jj)*4
                for e in range(2):
                    a = acc(2*j+e, qt)
                    for h in range(2): E(f"v_pk_mul_f32 {v(a+2*h,2)}, {v(a+2*h,2)}, {v(V_L+2*qt,2)} op_sel_hi:[1,0]")
                for e in range(2):
                    a = acc(2*j+e, qt)
                    E(f"v_cvt_pk_bf16_f32 {v(d+2*e)}, {v(a)}, {v(a+1)}\nv_cvt_pk_bf16_f32 {v(d+2*e+1)}, {v(a+2)}, {v(a+3)}")
                off = jp*6144 + qt*2048 + jj*1024
                if off and off % 4096 == 0: E(f"s_add_u32 {s(S_T0)}, {s(S_T0)}, 4096")
                E(f"buffer_store_dwordx4 {v(d,4)}, {T0}, {s(SRD_S,4)}, {s(S_T0)} offen offset:{off%4096}{cfg.o_st}")

def k1(E, cfg):
    name = "k1_kernel"
    prologue(E, name, 256)
    stamp(E, cfg, 0)
    srd(E, SRD_S, 28, 1 << 28)
    E(f"s_cmp_ge_u32 {s(S_WAVE)}, 4\ns_cbranch_scc1 L_k1_loader")
    L, T0, T1, T2 = v(V_LANE), v(V_T0), v(V_T1), v(V_T2)
    a_addr_init(E, "0")
    E(f"s_mul_i32 {s(S_T0)}, {s(S_WAVE)}, 6144\ns_add_u32 {s(S_T0)}, {s(S_T0)}, 16384")
    E(f"v_and_b32 {T0}, 15, {L}\nv_lshrrev_b32 {T1}, 1, {T0}\nv_lshrrev_b32 {T2}, 4, {L}\nv_xor_b32 {T1}, {T1}, {T2}\nv_lshlrev_b32 {T1}, 4, {T1}")
    E(f"v_lshl_add_u32 {T1}, {T0}, 7, {T1}\nv_add_u32 {v(V_B)}, {s(S_T0)}, {T1}\nv_xor_b32 {v(V_B+1)}, 64, {v(V_B)}")
    zero_acc(E)
    gemm(E, "q")
    stamp(E, cfg, 2)
    attention(E, cfg)
    if cfg.stamps:
        E("s_waitcnt vmcnt(0)"); stamp(E, cfg, 4); stamp(E, cfg, 1); stamps_out(E, cfg, 0, 5)
    E("s_endpgm")
    E.label("L_k1_loader")
    srd(E, SRD_X, 4, 768*2048); srd(E, SRD_W, 10, 1024*8192); srd(E, SRD_K, 6, 1 << 25); srd(E, SRD_V, 8, 1 << 25)
    E(f"s_sub_u32 {s(S_T2)}, {s(S_WAVE)}, 4")
    loader_setup_gemm(E, None, 8192, True)
    rot_init(E, cfg)
    E(f"s_lshl_b32 {s(S_WB)}, {s(S_HG)}, 3\ns_add_u32 {s(S_WB)}, {s(S_WB)}, {s(S_J7)}")
    E(f"s_lshl_b32 {s(S_KVB)}, {s(S_P)}, 1\ns_lshr_b32 {s(S_T0)}, {s(S_T2)}, 1\ns_add_u32 {s(S_KVB)}, {s(S_KVB)}, {s(S_T0)}\ns_lshl_b32 {s(S_KVB)}, {s(S_KVB)}, 5")
    E(f"s_add_u32 {s(S_KVB)}, {s(S_KVB)}, {s(S_WB)}\ns_lshl_b32 {s(S_KVB)}, {s(S_KVB)}, 17\ns_and_b32 {s(S_T0)}, {s(S_T2)}, 1\ns_lshl_b32 {s(S_T0)}, {s(S_T0)}, 13\ns_add_u32 {s(S_KVB)}, {s(S_KVB)}, {s(S_T0)}")
    E(f"s_lshl_b32 {s(S_WB)}, {s(S_WB)}, 8\ns_mul_i32 {s(S_XB)}, {s(S_P)}, {192*2048}\ns_mov_b32 {s(S_SLOT)}, 0")
    iq = lambda: issue_gemm_stage(E, 8192, 128, SRD_X, cfg.w_flag, cfg.x_flag)
    E(f"s_mov_b32 {s(S_CNT)}, 0")
    E.loop("L_k1_l0", iq, f"s_add_u32 {s(S_CNT)}, {s(S_CNT)}, 1\ns_cmp_lt_u32 {s(S_CNT)}, 3\ns_cbranch_scc1 L_k1_l0")
    E(f"v_lshrrev_b32 {T0}, 4, {L}\nv_and_b32 {T1}, 15, {L}")
    for j in range(4):
        E(f"v_or_b32 {T2}, {4*j}, {T0}\nv_xor_b32 {T2}, {T2}, {T1}\nv_lshlrev_b32 {T2}, 4, {T2}\nv_lshl_add_u32 {v(LK+j)}, {T0}, 8, {T2}")
    for j in range(2):
        E(f"v_or_b32 {T2}, {4*j}, {T0}\nv_lshlrev_b32 {T2}, 1, {T2}\nv_xor_b32 {T2}, {T2}, {T1}\nv_lshlrev_b32 {T2}, 4, {T2}\nv_lshl_add_u32 {v(LV+j)}, {T0}, 8, {T2}")
    def b1():
        E("s_waitcnt vmcnt(20)\ns_barrier"); iq()
    E.loop("L_k1_l1", b1, f"s_add_u32 {s(S_CNT)}, {s(S_CNT)}, 1\ns_cmp_lt_u32 {s(S_CNT)}, 16\ns_cbranch_scc1 L_k1_l1")
    stamp(E, cfg, 1)
    E("s_waitcnt vmcnt(20)\ns_barrier"); issue_kv_stage(E, cfg, False)
    E("s_waitcnt vmcnt(18)\ns_barrier"); issue_kv_stage(E, cfg, True)
    E(f"s_mov_b32 {s(S_CNT)}, 0")
    def b2():
        E("s_waitcnt vmcnt(16)\ns_barrier"); issue_kv_stage(E, cfg, False)
        E("s_waitcnt vmcnt(16)\ns_barrier"); issue_kv_stage(E, cfg, True)
    E.loop("L_k1_l2", b2, f"s_add_u32 {s(S_CNT)}, {s(S_CNT)}, 1\ns_cmp_lt_u32 {s(S_CNT)}, 7\ns_cbranch_scc1 L_k1_l2")
    stamp(E, cfg, 2)
    E("s_waitcnt vmcnt(16)\ns_barrier\ns_waitcnt vmcnt(8)\ns_barrier\ns_waitcnt vmcnt(0)")
    stamp(E, cfg, 3)
    E("s_barrier\ns_barrier")
    if cfg.stamps:
        stamp(E, cfg, 4); stamps_out(E, cfg, 0, 5)
    E.label(f"L_end_{name}")
    E("s_endpgm")

def k2(E, cfg):
    name = "k2_kernel"
    prologue(E, name, 256)
    stamp(E, cfg, 0)
    srd(E, SRD_S, 28, 1 << 28)
    E(f"s_cmp_ge_u32 {s(S_WAVE)}, 4\ns_cbranch_scc1 L_k2_loader")
    L, T0, T1, T2 = v(V_LANE), v(V_T0), v(V_T1), v(V_T2)
    a_addr_init(E, "0")
    E(f"s_mul_i32 {s(S_T0)}, {s(S_WAVE)}, 6144\ns_add_u32 {s(S_T0)}, {s(S_T0)}, 16384")
    E(f"v_lshlrev_b32 {T1}, 4, {L}\nv_add_u32 {v(V_B)}, {s(S_T0)}, {T1}\nv_add_u32 {v(V_B+1)}, 1024, {v(V_B)}")
    zero_acc(E)
    gemm(E, "o")
    stamp(E, cfg, 1)
    E(f"s_lshl_b32 {s(S_T0)}, {s(S_BR)}, 2\ns_add_u32 {s(S_T0)}, {s(S_T0)}, {s(S_P)}\ns_lshl_b32 {s(S_T0)}, {s(S_T0)}, 3\ns_add_u32 {s(S_T0)}, {s(S_T0)}, {s(S_J7)}")
    E(f"s_lshl_b32 {s(S_T0)}, {s(S_T0)}, 2\ns_add_u32 {s(S_T0)}, {s(S_T0)}, {s(S_WAVE)}\ns_lshl_b32 {s(S_T0)}, {s(S_T0)}, 2\ns_add_u32 {s(S_T0)}, {s(S_T0)}, {s(S_HG)}")
    E(f"s_mul_i32 {s(S_T0)}, {s(S_T0)}, 24576\ns_add_u32 {s(S_T0)}, {s(S_T0)}, {WS_P}")
    E(f"v_lshlrev_b32 {T0}, 4, {L}")
    for n in range(24):
        if n and n % 4 == 0: E(f"s_add_u32 {s(S_T0)}, {s(S_T0)}, 4096")
        E(f"buffer_store_dwordx4 {v(V_ACC+4*n,4)}, {T0}, {s(SRD_S,4)}, {s(S_T0)} offen offset:{1024*(n%4)}{cfg.p_st}")
    if cfg.stamps:
        E("s_waitcnt vmcnt(0)"); stamp(E, cfg, 2); stamps_out(E, cfg, 1, 3)
    E("s_endpgm")
    E.label("L_k2_loader")
    srd(E, SRD_W, 12, 4096*2048)
    E(f"s_sub_u32 {s(S_T2)}, {s(S_WAVE)}, 4")
    loader_setup_gemm(E, None, 2048, False)
    rot_init(E, cfg)
    E(f"s_lshl_b32 {s(S_WB)}, {s(S_HG)}, 21\ns_lshl_b32 {s(S_T0)}, {s(S_J7)}, 8\ns_add_u32 {s(S_WB)}, {s(S_WB)}, {s(S_T0)}")
    E(f"s_lshl_b32 {s(S_T0)}, {s(S_BR)}, 2\ns_add_u32 {s(S_T0)}, {s(S_T0)}, {s(S_P)}\ns_lshl_b32 {s(S_T0)}, {s(S_T0)}, 2\ns_add_u32 {s(S_T0)}, {s(S_T0)}, {s(S_T2)}")
    E(f"s_lshl_b32 {s(S_T0)}, {s(S_T0)}, 2\ns_add_u32 {s(S_T0)}, {s(S_T0)}, {s(S_HG)}\ns_mul_i32 {s(S_XB)}, {s(S_T0)}, {8*12288}\ns_add_u32 {s(S_XB)}, {s(S_XB)}, {WS_O}")
    E(f"s_mov_b32 {s(S_SLOT)}, 0")
    iq = lambda: issue_gemm_stage(E, 2048, 6144, SRD_S, cfg.wo_flag, cfg.o_ld)
    E(f"s_mov_b32 {s(S_CNT)}, 0")
    E.loop("L_k2_l0", iq, f"s_add_u32 {s(S_CNT)}, {s(S_CNT)}, 1\ns_cmp_lt_u32 {s(S_CNT)}, 3\ns_cbranch_scc1 L_k2_l0")
    def b1():
        E("s_waitcnt vmcnt(20)\ns_barrier"); iq()
    E.loop("L_k2_l1", b1, f"s_add_u32 {s(S_CNT)}, {s(S_CNT)}, 1\ns_cmp_lt_u32 {s(S_CNT)}, 16\ns_cbranch_scc1 L_k2_l1")
    E("s_waitcnt vmcnt(20)\ns_barrier\ns_waitcnt vmcnt(10)\ns_barrier\ns_waitcnt vmcnt(0)\ns_barrier\ns_barrier")
    E.label(f"L_end_{name}")
    E("s_endpgm")

def k3(E, cfg):
    name = "k3_kernel"
    E.raw(f".globl {name}\n.p2align 8\n.type {name},@function\n{name}:")
    E(f"s_cmp_ge_u32 s2, 256\ns_cbranch_scc1 L_end_{name}")
    E("s_load_dwordx2 s[24:25], s[0:1], 80\ns_load_dwordx2 s[28:29], s[0:1], 96")
    stamp(E, cfg, 0)
    L, T0, T1, T2 = v(V_LANE), v(V_T0), v(V_T1), v(V_T2)
    E(f"v_lshrrev_b32 {T0}, 6, v0\nv_and_b32 {L}, 63, v0\nv_readfirstlane_b32 {s(S_WAVE)}, {T0}")
    E(f"s_mul_i32 {s(S_T0)}, s2, {4*24576}\ns_mul_i32 {s(S_T1)}, {s(S_WAVE)}, 6144\ns_add_u32 {s(S_T0)}, {s(S_T0)}, {s(S_T1)}\ns_add_u32 {s(S_T0)}, {s(S_T0)}, {WS_P}")
    E(f"v_lshlrev_b32 {T0}, 4, {L}")
    E("s_waitcnt lgkmcnt(0)")
    srd(E, SRD_S, 28, 1 << 28); srd(E, SRD_X, 24, 768*4096)
    for hg in range(4):
        E(f"s_add_u32 {s(S_T1)}, {s(S_T0)}, {hg*24576}\ns_add_u32 {s(S_T2)}, {s(S_T0)}, {hg*24576+4096}")
        for n in range(6):
            E(f"buffer_load_dwordx4 {v(32+(hg*6+n)*4,4)}, {T0}, {s(SRD_S,4)}, {s(S_T1 if n < 4 else S_T2)} offen offset:{1024*(n%4)}{cfg.p_ld}")
    E(f"s_and_b32 {s(S_T0)}, s2, 3\ns_bfe_u32 {s(S_T1)}, s2, 0x20005\ns_lshl_b32 {s(S_T1)}, {s(S_T1)}, 2\ns_add_u32 {s(S_T0)}, {s(S_T0)}, {s(S_T1)}\ns_mul_i32 {s(S_T0)}, {s(S_T0)}, {48*4096}")
    E(f"s_lshr_b32 {s(S_T1)}, s2, 7\ns_lshl_b32 {s(S_T1)}, {s(S_T1)}, 11\ns_add_u32 {s(S_T0)}, {s(S_T0)}, {s(S_T1)}")
    E(f"s_bfe_u32 {s(S_T1)}, s2, 0x30002\ns_lshl_b32 {s(S_T1)}, {s(S_T1)}, 8\ns_add_u32 {s(S_T0)}, {s(S_T0)}, {s(S_T1)}")
    E(f"s_lshl_b32 {s(S_T1)}, {s(S_WAVE)}, 6\ns_add_u32 {s(S_T0)}, {s(S_T0)}, {s(S_T1)}")
    E(f"v_lshrrev_b32 {T1}, 4, {L}\nv_and_b32 {T2}, 1, {T1}\nv_lshrrev_b32 {T1}, 1, {T1}\nv_lshl_or_b32 {T1}, {T2}, 1, {T1}\nv_lshlrev_b32 {T1}, 4, {T1}")
    E(f"v_and_b32 {T2}, 15, {L}\nv_lshl_add_u32 {T1}, {T2}, 12, {T1}")
    for hg in range(1, 4):
        E(f"s_waitcnt vmcnt({18-6*hg})")
        for r in range(0, 24, 2): E(f"v_pk_add_f32 {v(32+r,2)}, {v(32+r,2)}, {v(32+24*hg+r,2)}")
    for qt in range(3):
        d = 4 + 4*qt
        for e in range(2):
            a = 32 + (e*3+qt)*4
            E(f"v_cvt_pk_bf16_f32 {v(d+2*e)}, {v(a)}, {v(a+1)}\nv_cvt_pk_bf16_f32 {v(d+2*e+1)}, {v(a+2)}, {v(a+3)}")
    for qt in range(3):
        d = 4 + 4*qt
        E(f"v_permlane16_swap_b32 {v(d)}, {v(d+2)}\nv_permlane16_swap_b32 {v(d+1)}, {v(d+3)}")
    for qt in range(3):
        E(f"buffer_store_dwordx4 {v(4+4*qt,4)}, {T1}, {s(SRD_X,4)}, {s(S_T0)} offen{cfg.out_st}")
        E(f"s_add_u32 {s(S_T0)}, {s(S_T0)}, {16*4096}")
    if cfg.stamps:
        E("s_waitcnt vmcnt(0)"); stamp(E, cfg, 1); stamps_out(E, cfg, 2, 2)
    E.label(f"L_end_{name}")
    E("s_endpgm")

def kd(name, vg):
    return (f".p2align 6\n.amdhsa_kernel {name}\n  .amdhsa_next_free_vgpr {vg}\n  .amdhsa_next_free_sgpr 102\n  .amdhsa_accum_offset {vg}\n"
            "  .amdhsa_group_segment_fixed_size 0\n  .amdhsa_kernarg_size 104\n  .amdhsa_user_sgpr_count 2\n  .amdhsa_user_sgpr_kernarg_segment_ptr 1\n"
            "  .amdhsa_system_sgpr_workgroup_id_x 1\n.end_amdhsa_kernel\n")

def build(cfg):
    out = ("; Q projection + attention, split-K output projection, reduction\n"
           "; @launch kernel=k1_kernel grid=(256,1,1) block=(512,1,1) lds=163840\n"
           "; @launch kernel=k2_kernel grid=(256,1,1) block=(512,1,1) lds=163840\n"
           "; @launch kernel=k3_kernel grid=(256,1,1) block=(256,1,1) lds=0\n"
           '.amdgcn_target "amdgcn-amd-amdhsa--gfx950"\n.text\n')
    for k in (k1, k2, k3):
        E = Emitter(); k(E, cfg); out += E.text()
    out += '.section .rodata,"a"\n' + kd("k1_kernel", 256) + kd("k2_kernel", 256) + kd("k3_kernel", 128)
    return out

if __name__ == "__main__":
    kw = dict(a.split("=", 1) for a in sys.argv[2:])
    for k in kw:
        if kw[k] in ("True", "False"): kw[k] = kw[k] == "True"
        elif kw[k]: kw[k] = " " + kw[k].replace("+", " ")
    open(sys.argv[1], "w").write(build(Cfg(**kw)))
```

```python
import re
def add_trace(txt, kernels):
    out = []; cur = None; inl = False
    for l in txt.split("\n"):
        m = re.match(r"L_(\w+?)_loader:", l)
        if m:
            cur = m.group(1); inl = True
            out += [l, "    s_mov_b32 s100, 0", "    v_mov_b32 v28, 0", "    v_mov_b32 v29, 0"]; continue
        if inl and l.strip() in ("s_barrier", "; MARK"):
            out += [l, "    s_memrealtime s[96:97]", "    s_memtime s[98:99]", "    s_mov_b32 m0, s100", "    s_add_u32 s100, s100, 1", "    s_waitcnt lgkmcnt(0)",
                    "    v_writelane_b32 v28, s96, m0", "    v_writelane_b32 v29, s98, m0"]; continue
        if inl and l.startswith("L_end_"):
            k = kernels.index(cur)
            out += ["    s_lshl_b32 s57, s2, 3", "    s_add_u32 s57, s57, s52", "    s_lshl_b32 s57, s57, 9", f"    s_add_u32 s57, s57, {(72 + k) << 20}",
                    "    v_lshlrev_b32 v2, 3, v1", "    buffer_store_dwordx2 v[28:29], v2, s[48:51], s57 offen"]
            inl = False
        out.append(l)
    return "\n".join(out)
```

```python
import math, struct, sys
from emit import *

NAME = "concat_heads__mha_block_cached__gqa_block_cached__near_ridge"
KN = NAME + "_kernel"
SLOT = 40960
WS_O, WS_P, WS_F, WS_T = 0, 16 << 20, 32 << 20, 64 << 20
C_SCALE = struct.unpack("<I", struct.pack("<f", math.log2(math.e) / math.sqrt(128.0)))[0]
THRESH = 0x47800000

SRD_X, SRD_W, SRD_K, SRD_V, SRD_S, SRD_D = 32, 36, 40, 44, 48, 72
S_WAVE, S_BR, S_HG, S_J7, S_P = 52, 53, 54, 55, 56
S_T0, S_T1, S_LW, S_CNT, S_PH, S_KC, S_WB, S_XB, S_DELTA, S_KVB, S_NT = 57, 58, 59, 60, 61, 62, 63, 64, 65, 66, 67
S_C = 68
S_MASK, S_CLS = 70, 71
S_M0W, S_M0X, S_T3, S_SPIN = 76, 77, 78, 79
S_TS = 80

V_LANE = 1
V_A, V_B, V_K, V_NM = 4, 12, 12, 16
V_L = [2, 28, 30]
V_F, V_ACC, V_Q, V_S = 32, 64, 160, 208
TA, TB, TC = 244, 245, 246

def acc(t, qt): return V_ACC + (t * 3 + qt) * 4
def frag(n): return V_F + (n % 8) * 4
def sreg(kt, qt): return V_S + (kt * 3 + qt) * 4
def qreg(qt, j): return V_Q + (qt * 4 + j) * 4
def breg(st, qt): return V_S + (st * 3 + qt) * 4
MF = "v_mfma_f32_16x16x32_bf16"

class Cfg:
    kv_flag = " nt"; w_flag = ""; x_flag = ""; wo_flag = ""; out_st = ""
    rot = 8
    nburst = 5; bper = 2; bfirst = 3
    kvper = 6
    stamps = False
    def __init__(self, **kw): self.__dict__.update(kw)

def srd(E, d, base, nbytes):
    E(f"s_mov_b32 {s(d)}, {s(base)}\ns_and_b32 {s(d+1)}, {s(base+1)}, 0xffff\ns_mov_b32 {s(d+2)}, {nbytes}\ns_mov_b32 {s(d+3)}, 0x20000")

def stamp(E, cfg, i):
    if cfg.stamps: E(f"s_memrealtime {s(S_TS+2*i,2)}")

def stamps_out(E, cfg, n):
    if not cfg.stamps: return
    E("s_waitcnt lgkmcnt(0)")
    E(f"s_lshl_b32 {s(S_T0)}, s2, 3\ns_add_u32 {s(S_T0)}, {s(S_T0)}, {s(S_WAVE)}\ns_lshl_b32 {s(S_T0)}, {s(S_T0)}, 7\ns_add_u32 {s(S_T0)}, {s(S_T0)}, {WS_T}")
    E(f"v_mov_b32 v2, 0")
    for i in range(n):
        E(f"v_mov_b32 v4, {s(S_TS+2*i)}\nv_mov_b32 v5, {s(S_TS+2*i+1)}")
        E(f"buffer_store_dwordx2 v[4:5], v2, {s(SRD_S,4)}, {s(S_T0)} offen offset:{8*i}")
        E("s_nop 1")

def put(fill, i, *items): fill.setdefault(i, []).extend(items)

def a_addr_init(E, base_s, xor_s=None):
    L = v(V_LANE)
    E(f"v_lshrrev_b32 {v(TA)}, 2, {L}\nv_and_b32 {v(TB)}, 7, {v(TA)}\nv_lshlrev_b32 {v(TB)}, 5, {v(TB)}\nv_lshl_add_u32 {v(TB)}, {v(TA)}, 8, {v(TB)}")
    E(f"v_and_b32 {v(TC)}, 3, {L}\nv_lshl_add_u32 {v(TB)}, {v(TC)}, 3, {v(TB)}")
    E(f"v_xor_b32 {v(V_A)}, {xor_s}, {v(TB)}" if xor_s else f"v_add_u32 {v(V_A)}, {base_s}, {v(TB)}")
    for t in range(1, 8): E(f"v_xor_b32 {v(V_A+t)}, {t<<5}, {v(V_A)}")

def rd_a(n):
    st, t = (n >> 3) & 1, n & 7
    return [f"ds_read_b64_tr_b16 {v(frag(n),2)}, {v(V_A+t)} offset:{st*8192}",
            f"ds_read_b64_tr_b16 {v(frag(n)+2,2)}, {v(V_A+t)} offset:{st*8192+4096}"]
def rd_b(st): return [f"ds_read_b128 {v(breg(st,qt),4)}, {v(V_B+st)} offset:{qt*2048}" for qt in range(3)]
def rd_k(n): return [f"ds_read_b128 {v(frag(n),4)}, {v(V_K+(n&3))} offset:{(n>>2)*4096}"]

def gemm(E):
    E("s_barrier")
    b0 = rd_b(0)
    for n in range(6):
        for t in rd_a(n): E(t)
        if n < 3: E(b0[n])
    E(f"s_mov_b32 {s(S_CNT)}, 0\ns_mov_b32 {s(S_T1)}, {SLOT}")
    def body():
        mf = [f"{MF} {v(acc(n&7,qt),4)}, {v(frag(n),4)}, {v(breg(n>>3,qt),4)}, {v(acc(n&7,qt),4)}" for n in range(16) for qt in range(3)]
        fill = {}
        put(fill, 2, f"s_add_u32 {s(S_CNT)}, {s(S_CNT)}, 1", f"s_and_b32 {s(S_T0)}, {s(S_CNT)}, 3")
        put(fill, 5, f"s_cselect_b32 {s(S_DELTA)}, {s(S_T1)}, {(-3*SLOT) & 0xffffffff}")
        put(fill, 29, "s_barrier")
        for n in range(16):
            a = rd_a(n + 6)
            put(fill, 3*n, a[0]); put(fill, 3*n+1, a[1])
        for k, t in enumerate(rd_b(1)): put(fill, 3*k+5, t)
        for k, t in enumerate(b0): put(fill, 3*k+32, t)
        add = lambda r: f"v_add_u32 {v(r)}, {s(S_DELTA)}, {v(r)}"
        for t in range(8): put(fill, 3*(t+3)+1, add(V_A+t))
        put(fill, 17, add(V_B)); put(fill, 20, add(V_B+1))
        interleave(E, mf, fill)
    E.loop("L_gemm", body, f"s_cmp_lt_u32 {s(S_CNT)}, 16\ns_cbranch_scc1 L_gemm")
    E("s_waitcnt lgkmcnt(0)")

def zero_acc(E):
    for r in range(V_ACC, V_ACC + 96, 2): E(f"v_mov_b64 {v(r,2)}, 0")

def xlane(E, op, regs, tmp):
    for sw in ("v_permlane32_swap_b32", "v_permlane16_swap_b32"):
        for r, t in zip(regs, tmp): E(f"v_mov_b32 {v(t)}, {v(r)}")
        for r, t in zip(regs, tmp): E(f"{sw} {v(t)}, {v(r)}")
        for r, t in zip(regs, tmp): E(f"{op} {v(r)}, {v(r)}, {v(t)}")

SUM = [V_F, V_F + 2, V_F + 4]
def sum_ops(kts):
    out = []
    for kt in kts:
        for h in range(2):
            for qt in range(3):
                r = sreg(kt, qt)
                if kt == 0 and h == 0: continue
                if kt == 0: out.append(f"v_pk_add_f32 {v(SUM[qt],2)}, {v(r,2)}, {v(r+2,2)}")
                else: out.append(f"v_pk_add_f32 {v(SUM[qt],2)}, {v(SUM[qt],2)}, {v(r+2*h,2)}")
    return out
def cvt_ops(kts):
    return [f"v_cvt_pk_bf16_f32 {v(sreg(kt&2,qt)+2*(kt&1)+h)}, {v(sreg(kt,qt)+2*h)}, {v(sreg(kt,qt)+2*h+1)}" for kt in kts for h in range(2) for qt in range(3)]
def exp_ops(kt): return [f"v_exp_f32 {v(sreg(kt,qt)+i)}, {v(sreg(kt,qt)+i)}" for qt in range(3) for i in range(4)]
def qk_mfmas(cinit):
    return [f"{MF} {v(sreg(n>>2,qt),4)}, {v(frag(n),4)}, {v(qreg(qt,n&3),4)}, {v(sreg(n>>2,qt),4) if n&3 else cinit(qt)}" for n in range(16) for qt in range(3)]

def attention(E, cfg):
    L = v(V_LANE)
    E(f"s_mov_b32 {s(S_C)}, {C_SCALE}\ns_mov_b32 {s(S_C+1)}, {C_SCALE}")
    E(f"s_lshr_b32 {s(S_T0)}, {s(S_WAVE)}, 1\ns_lshl_b32 {s(S_T0)}, {s(S_T0)}, 14")
    E(f"v_lshrrev_b32 {v(TA)}, 4, {L}\nv_and_b32 {v(TB)}, 1, {v(TA)}\nv_lshrrev_b32 {v(TA)}, 1, {v(TA)}\nv_lshl_or_b32 {v(TA)}, {v(TB)}, 1, {v(TA)}")
    E(f"v_and_b32 {v(TB)}, 15, {L}\nv_xor_b32 {v(TA)}, {v(TA)}, {v(TB)}\nv_lshlrev_b32 {v(TA)}, 4, {v(TA)}\nv_lshl_add_u32 {v(TA)}, {v(TB)}, 8, {v(TA)}\nv_add_u32 {v(V_K)}, {s(S_T0)}, {v(TA)}")
    for j in range(1, 4): E(f"v_xor_b32 {v(V_K+j)}, {j<<6}, {v(V_K)}")
    E(f"s_add_u32 {s(S_T0)}, {s(S_T0)}, {SLOT}")
    a_addr_init(E, s(S_T0))
    for qt in range(3):
        E(f"v_mov_b32 {v(V_NM+4*qt)}, 0x7f800000\nv_mov_b64 {v(V_L[qt],2)}, 0")
    for j in range(4):
        for qt in range(3):
            q = qreg(qt, j)
            for e in range(2):
                a = acc(2*j+e, qt)
                for h in range(2): E(f"v_pk_mul_f32 {v(a+2*h,2)}, {v(a+2*h,2)}, {s(S_C,2)}")
            for e in range(2):
                a = acc(2*j+e, qt)
                E(f"v_cvt_pk_bf16_f32 {v(q+2*e)}, {v(a)}, {v(a+1)}\nv_cvt_pk_bf16_f32 {v(q+2*e+1)}, {v(a+2)}, {v(a+3)}")
    for qt in range(3):
        for j in range(4):
            q = qreg(qt, j)
            E(f"v_permlane16_swap_b32 {v(q)}, {v(q+2)}\nv_permlane16_swap_b32 {v(q+1)}, {v(q+3)}")
    E(f"s_mov_b32 {s(S_CNT)}, 0\ns_mov_b32 {s(S_DELTA)}, {2*SLOT}\ns_mov_b32 {s(S_T3)}, {THRESH}")
    prek = sum([rd_k(n) for n in range(6)], [])
    E.label("L_exact")
    E("s_nop 7")
    for t in prek: E(t)
    fill = {}
    for n in range(10): put(fill, 3*n, *rd_k(n + 6))
    interleave(E, qk_mfmas(lambda qt: "0"), fill)
    MN = [V_F + 8, V_F + 10, V_F + 12]; AL = [V_F + 14, V_F + 16, V_F + 18]; TM = [V_F + 9, V_F + 11, V_F + 13]
    for kt in range(4):
        for h in range(2):
            for qt in range(3):
                src = f"-{v(V_NM+4*qt)}" if (kt == 0 and h == 0) else v(MN[qt])
                E(f"v_max3_f32 {v(MN[qt])}, {src}, {v(sreg(kt,qt)+2*h)}, {v(sreg(kt,qt)+2*h+1)}")
    xlane(E, "v_max_f32", MN, TM)
    for qt in range(3): E(f"v_sub_f32_e64 {v(AL[qt])}, -{v(V_NM+4*qt)}, {v(MN[qt])}")
    for qt in range(3): E(f"v_exp_f32 {v(AL[qt])}, {v(AL[qt])}")
    for qt in range(3):
        for i in range(4): E(f"v_sub_f32 {v(V_NM+4*qt+i)}, 0, {v(MN[qt])}")
    for kt in range(4):
        for qt in range(3):
            for h in range(2): E(f"v_pk_add_f32 {v(sreg(kt,qt)+2*h,2)}, {v(sreg(kt,qt)+2*h,2)}, {v(V_NM+4*qt,2)}")
    for kt in range(4):
        for t in exp_ops(kt): E(t)
    for qt in range(3):
        E(f"v_pk_mul_f32 {v(V_L[qt],2)}, {v(V_L[qt],2)}, {v(AL[qt],2)} op_sel_hi:[1,0]")
        for t in range(8):
            for h in range(2):
                r = acc(t, qt) + 2*h
                E(f"v_pk_mul_f32 {v(r,2)}, {v(r,2)}, {v(AL[qt],2)} op_sel_hi:[1,0]")
    for t in sum_ops(range(4)) + cvt_ops([0, 1]): E(t)
    E("s_branch L_join")
    def body():
        fill = {}
        for n in range(10): put(fill, 3*n, *rd_k(n + 6))
        ex = exp_ops(0) + exp_ops(1) + exp_ops(2)
        for k, t in enumerate(ex): put(fill, min(14 + k, 47), t)
        interleave(E, qk_mfmas(lambda qt: v(V_NM+4*qt, 4)), fill)
        for t in sum_ops([0, 1]) + cvt_ops([0, 1]) + exp_ops(3) + sum_ops([2, 3]): E(t)
        E(f"v_max3_f32 {v(V_F+6)}, {v(SUM[0])}, {v(SUM[0]+1)}, {v(SUM[1])}\nv_max3_f32 {v(V_F+7)}, {v(SUM[1]+1)}, {v(SUM[2])}, {v(SUM[2]+1)}")
        E(f"v_max_f32 {v(V_F+6)}, {v(V_F+6)}, {v(V_F+7)}\nv_cmp_lt_f32 vcc, {s(S_T3)}, {v(V_F+6)}\ns_nop 4\ns_cbranch_vccnz L_exact")
        E.label("L_join")
        for qt in range(3): E(f"v_pk_add_f32 {v(V_L[qt],2)}, {v(V_L[qt],2)}, {v(SUM[qt],2)}")
        E("s_barrier")
        for n in range(6):
            for t in rd_a(n): E(t)
        for t in cvt_ops([2, 3]): E(t)
        mf = [f"{MF} {v(acc(n&7,qt),4)}, {v(frag(n),4)}, {v(sreg(2*(n>>3),qt),4)}, {v(acc(n&7,qt),4)}" for n in range(16) for qt in range(3)]
        fill = {}
        for n in range(10):
            a = rd_a(n + 6)
            put(fill, 3*n, a[0]); put(fill, 3*n+1, a[1])
        add = lambda r: f"v_add_u32 {v(r)}, {s(S_DELTA)}, {v(r)}"
        for j in range(4): put(fill, 2 + 3*j, add(V_K+j))
        for t in range(8): put(fill, 3*(t+3)+1, add(V_A+t))
        put(fill, 32, f"s_sub_u32 {s(S_DELTA)}, 0, {s(S_DELTA)}", f"s_add_u32 {s(S_CNT)}, {s(S_CNT)}, 1")
        put(fill, 29, "s_barrier")
        for k, t in enumerate(prek): put(fill, 30 + 3*k, t)
        interleave(E, mf, fill)
    E.lds = [set(Ins(t).writes) for t in prek]
    E.loop("L_attn", body, f"s_cmp_lt_u32 {s(S_CNT)}, 8\ns_cbranch_scc1 L_attn")
    E("s_waitcnt lgkmcnt(0)")
    stamp(E, cfg, 2)
    LS = [V_F, V_F + 2, V_F + 4]
    for qt in range(3): E(f"v_add_f32 {v(LS[qt])}, {v(V_L[qt])}, {v(V_L[qt]+1)}")
    xlane(E, "v_add_f32", LS, [V_F + 1, V_F + 3, V_F + 5])
    for qt in range(3): E(f"v_rcp_f32 {v(LS[qt])}, {v(LS[qt])}")
    E(f"s_mul_i32 {s(S_T0)}, {s(S_WAVE)}, 6144\ns_add_u32 {s(S_T0)}, {s(S_T0)}, 16384")
    E(f"v_lshl_add_u32 {v(V_B)}, {L}, 4, {s(S_T0)}\nv_add_u32 {v(V_B+1)}, 1024, {v(V_B)}")
    for jp in range(2):
        for qt in range(3):
            for jj in range(2):
                j = 2*jp + jj; d = V_Q + ((jp*3+qt)*2+jj)*4
                for e in range(2):
                    a = acc(2*j+e, qt)
                    for h in range(2): E(f"v_pk_mul_f32 {v(a+2*h,2)}, {v(a+2*h,2)}, {v(LS[qt],2)} op_sel_hi:[1,0]")
                for e in range(2):
                    a = acc(2*j+e, qt)
                    E(f"v_cvt_pk_bf16_f32 {v(d+2*e)}, {v(a)}, {v(a+1)}\nv_cvt_pk_bf16_f32 {v(d+2*e+1)}, {v(a+2)}, {v(a+3)}")
                E(f"ds_write_b128 {v(V_B)}, {v(d,4)} offset:{jp*SLOT + qt*2048 + jj*1024}")
    E(f"s_lshl_b32 {s(S_T0)}, {s(S_HG)}, 6")
    a_addr_init(E, None, s(S_T0))
    zero_acc(E)
    E(f"s_mov_b32 {s(S_PH)}, 1\ns_waitcnt lgkmcnt(0)")
    stamp(E, cfg, 3)
    E("s_branch L_gemm_entry")

def final(E, cfg):
    L = v(V_LANE)
    stamp(E, cfg, 4)
    E(f"s_lshl_b32 {s(S_T0)}, {s(S_BR)}, 2\ns_add_u32 {s(S_T0)}, {s(S_T0)}, {s(S_P)}\ns_lshl_b32 {s(S_T0)}, {s(S_T0)}, 3\ns_add_u32 {s(S_T0)}, {s(S_T0)}, {s(S_NT)}")
    E(f"s_mul_i32 {s(S_T0)}, {s(S_T0)}, {4*3*12288}\ns_mul_i32 {s(S_T1)}, {s(S_WAVE)}, 3072\ns_add_u32 {s(S_T0)}, {s(S_T0)}, {s(S_T1)}\ns_add_u32 {s(S_XB)}, {s(S_T0)}, {WS_P}")
    E(f"v_lshlrev_b32 v2, 4, {L}")
    for k in range(1, 4):
        E(f"s_xor_b32 {s(S_T0)}, {s(S_HG)}, {k}\ns_mul_i32 {s(S_T0)}, {s(S_T0)}, {3*12288}\ns_add_u32 {s(S_T0)}, {s(S_T0)}, {(k-1)*12288}\ns_add_u32 {s(S_T0)}, {s(S_T0)}, {s(S_XB)}")
        for qt in range(3):
            d = V_Q + ((k-1)*3+qt)*4
            for e in range(2):
                a = acc(2*k+e, qt)
                E(f"v_cvt_pk_bf16_f32 {v(d+2*e)}, {v(a)}, {v(a+1)}\nv_cvt_pk_bf16_f32 {v(d+2*e+1)}, {v(a+2)}, {v(a+3)}")
            E(f"buffer_store_dwordx4 {v(d,4)}, v2, {s(SRD_S,4)}, {s(S_T0)} offen offset:{qt*1024} sc1")
    E(f"v_and_b32 v3, 3, {L}\nv_xor_b32 v3, s2, v3\nv_lshlrev_b32 v3, 10, v3")
    E(f"s_lshl_b32 {s(S_T1)}, {s(S_WAVE)}, 7\ns_add_u32 {s(S_T1)}, {s(S_T1)}, {WS_F + 512}")
    E(f"s_mul_i32 {s(S_T0)}, {s(S_HG)}, {3*12288}\ns_add_u32 {s(S_XB)}, {s(S_XB)}, {s(S_T0)}")
    E(f"v_mov_b32 v4, 1")
    srd(E, SRD_X, 24, 768*4096)
    E(f"s_lshl_b32 {s(S_T0)}, {s(S_P)}, 2\ns_add_u32 {s(S_T0)}, {s(S_T0)}, {s(S_WAVE)}\ns_mul_i32 {s(S_WB)}, {s(S_T0)}, {48*4096}")
    E(f"s_lshl_b32 {s(S_T0)}, {s(S_BR)}, 3\ns_add_u32 {s(S_T0)}, {s(S_T0)}, {s(S_NT)}\ns_lshl_b32 {s(S_T0)}, {s(S_T0)}, 2\ns_add_u32 {s(S_T0)}, {s(S_T0)}, {s(S_HG)}\ns_lshl_b32 {s(S_T0)}, {s(S_T0)}, 6\ns_add_u32 {s(S_WB)}, {s(S_WB)}, {s(S_T0)}")
    E(f"v_lshrrev_b32 v6, 4, {L}\nv_and_b32 v7, 1, v6\nv_lshrrev_b32 v6, 1, v6\nv_lshl_or_b32 v6, v7, 1, v6\nv_lshlrev_b32 v6, 4, v6\nv_and_b32 v7, 15, {L}\nv_lshl_add_u32 v6, v7, 12, v6")
    E("s_mov_b64 exec, 1\ns_waitcnt vmcnt(0)")
    E(f"buffer_store_dword v4, v3, {s(SRD_S,4)}, {s(S_T1)} offen sc1")
    stamp(E, cfg, 5)
    E("s_mov_b64 exec, 14")
    E.label("L_poll2")
    E(f"buffer_load_dword v5, v3, {s(SRD_S,4)}, {s(S_T1)} offen sc1\ns_waitcnt vmcnt(0)\nv_cmp_eq_u32 vcc, 0, v5\ns_nop 4\ns_cbranch_vccz L_poll2_done\ns_sleep 1\ns_sub_u32 {s(S_SPIN)}, {s(S_SPIN)}, 1\ns_cbranch_scc0 L_poll2")
    E.label("L_poll2_done")
    E("s_mov_b64 exec, -1")
    stamp(E, cfg, 6)
    for k in range(3):
        for qt in range(3):
            E(f"buffer_load_dwordx4 {v(V_S+(k*3+qt)*4,4)}, v2, {s(SRD_S,4)}, {s(S_XB)} offen offset:{qt*1024} sc1")
        if k < 2: E(f"s_add_u32 {s(S_XB)}, {s(S_XB)}, 12288")
    E(f"s_mov_b32 {s(S_T0)}, 0xffff0000")
    for k in range(3):
        for qt in range(3):
            E(f"s_waitcnt vmcnt({8-3*k-qt})")
            for i in range(4):
                w = V_S + (k*3+qt)*4 + i; t = V_F + 2*i
                E(f"v_lshlrev_b32 {v(t)}, 16, {v(w)}\nv_and_b32 {v(t+1)}, {s(S_T0)}, {v(w)}")
            for i in range(4):
                a = acc(i >> 1, qt) + 2*(i & 1)
                E(f"v_pk_add_f32 {v(a,2)}, {v(a,2)}, {v(V_F+2*i,2)}")
    for qt in range(3):
        d = V_F + 8 + 4*qt
        for e in range(2):
            a = acc(e, qt)
            E(f"v_cvt_pk_bf16_f32 {v(d+2*e)}, {v(a)}, {v(a+1)}\nv_cvt_pk_bf16_f32 {v(d+2*e+1)}, {v(a+2)}, {v(a+3)}")
    for qt in range(3):
        d = V_F + 8 + 4*qt
        E(f"v_permlane16_swap_b32 {v(d)}, {v(d+2)}\nv_permlane16_swap_b32 {v(d+1)}, {v(d+3)}")
    for qt in range(3):
        E(f"buffer_store_dwordx4 {v(V_F+8+4*qt,4)}, v6, {s(SRD_X,4)}, {s(S_WB)} offen{cfg.out_st}")
        if qt < 2: E(f"s_add_u32 {s(S_WB)}, {s(S_WB)}, {16*4096}")
    if cfg.stamps:
        E("s_waitcnt vmcnt(0)"); stamp(E, cfg, 7); stamps_out(E, cfg, 8)
    E("s_endpgm")

LW, LX, LK, LV, LL, LF, L0, L1, L2 = 4, 8, 14, 18, 20, 21, 22, 23, 24
NGRP = 7
def tile_reg(n, j): return 32 + (n % NGRP) * 32 + 4 * j

class Vm:
    def __init__(self, E): self.E = E; self.n = 0; self.mark = {}
    def op(self, text, tag=None):
        self.E(text); self.n += 1
        if tag is not None: self.mark[tag] = self.n
    def wait(self, tag, slack=0):
        self.E(f"s_waitcnt vmcnt({max(0, min(63, self.n - self.mark[tag] - slack))})")

def w_offsets(E, ldw, qproj):
    L = v(V_LANE)
    E(f"v_lshrrev_b32 {v(L0)}, 4, {L}\nv_and_b32 {v(L1)}, 15, {L}")
    if qproj:
        E(f"s_lshr_b32 {s(S_T0)}, {s(S_LW)}, 1\ns_lshl_b32 {s(S_T0)}, {s(S_T0)}, 5\ns_and_b32 {s(S_T1)}, {s(S_LW)}, 1\ns_lshl_b32 {s(S_T1)}, {s(S_T1)}, 2\ns_add_u32 {s(S_T0)}, {s(S_T0)}, {s(S_T1)}")
    else:
        E(f"s_lshl_b32 {s(S_T0)}, {s(S_LW)}, 4")
    step, sh = (8 if qproj else 4), int(math.log2(ldw))
    for j in range(2):
        E(f"v_or_b32 {v(L2)}, {j<<2}, {v(L0)}\nv_lshlrev_b32 {v(L2)}, 1, {v(L2)}\nv_xor_b32 {v(L2)}, {v(L2)}, {v(L1)}\nv_lshlrev_b32 {v(L2)}, 4, {v(L2)}")
        E(f"v_add_u32 {v(LW+j)}, {s(S_T0)}, {v(L0)}\nv_lshl_add_u32 {v(LW+j)}, {v(LW+j)}, {sh}, {v(L2)}")
    E(f"v_add_u32 {v(LW+1)}, {step*ldw - 1024}, {v(LW+1)}")
    for j in range(2): E(f"v_add_u32 {v(LW+2+j)}, {2*(step*ldw - 1024)}, {v(LW+j)}")

def issue_w(E, vm, st, ldw, flag, kc):
    E(f"s_mul_i32 {s(S_T0)}, {s(kc)}, {64*ldw}\ns_add_u32 m0, {s(S_M0W)}, {(st%4)*SLOT}\ns_add_u32 {s(S_T0)}, {s(S_T0)}, {s(S_WB)}")
    for j in range(4): vm.op(f"buffer_load_dwordx4 {v(LW+j)}, {s(SRD_W,4)}, {s(S_T0)} offen offset:{1024*j}{flag} lds", ("W", st))
def issue_x(E, vm, st, xstep, srdx, flag, kc):
    E(f"s_mul_i32 {s(S_T1)}, {s(kc)}, {xstep}\ns_add_u32 m0, {s(S_M0X)}, {(st%4)*SLOT}\ns_add_u32 {s(S_T1)}, {s(S_T1)}, {s(S_XB)}")
    for j in range(6):
        if j == 4: E(f"s_add_u32 m0, {s(S_M0X)}, {(st%4)*SLOT + 4096}")
        vm.op(f"buffer_load_dwordx4 {v(LX+j)}, {s(srdx,4)}, {s(S_T1)} offen offset:{1024*(j&3)}{flag} lds", ("X", st))
def adv(E, kc): E(f"s_add_u32 {s(kc)}, {s(kc)}, 1\ns_and_b32 {s(kc)}, {s(kc)}, 15")

def kv_load(E, vm, cfg, n, j, first, count=True):
    if first or j == 0 or j == 4: E(f"s_add_u32 {s(S_T0)}, {s(S_KVB)}, {(n>>1)*16384 + (j>>2)*4096}")
    isv = n & 1
    r = LV + (j & 1) if isv else LK + (j & 3)
    t = f"buffer_load_dwordx4 {v(tile_reg(n,j),4)}, {v(r)}, {s(SRD_V if isv else SRD_K,4)}, {s(S_T0)} offen offset:{1024*(j&3)}{cfg.kv_flag}"
    if count: vm.op(t, ("T", n))
    else: E(t)

def loader(E, cfg):
    L = v(V_LANE)
    vm = Vm(E)
    E.label("L_k_loader")
    srd(E, SRD_X, 4, 768*2048); srd(E, SRD_W, 10, 1024*8192)
    E(f"s_sub_u32 {s(S_LW)}, {s(S_WAVE)}, 4")
    w_offsets(E, 8192, True)
    if cfg.rot == 8: E(f"s_lshl_b32 {s(S_KC)}, {s(S_P)}, 1\ns_add_u32 {s(S_KC)}, {s(S_KC)}, {s(S_J7)}\ns_lshl_b32 {s(S_KC)}, {s(S_KC)}, 1\ns_and_b32 {s(S_KC)}, {s(S_KC)}, 15")
    else: E(f"s_add_u32 {s(S_KC)}, {s(S_P)}, {s(S_J7)}\ns_mul_i32 {s(S_KC)}, {s(S_KC)}, {16//cfg.rot}\ns_and_b32 {s(S_KC)}, {s(S_KC)}, 15")
    E(f"s_lshl_b32 {s(S_KVB)}, {s(S_HG)}, 3\ns_add_u32 {s(S_KVB)}, {s(S_KVB)}, {s(S_J7)}\ns_lshl_b32 {s(S_WB)}, {s(S_KVB)}, 8")
    E(f"s_lshl_b32 {s(S_M0W)}, {s(S_LW)}, 12\ns_mul_i32 {s(S_M0X)}, {s(S_LW)}, 6144\ns_add_u32 {s(S_M0X)}, {s(S_M0X)}, 16384")
    issue_w(E, vm, 0, 8192, cfg.w_flag, S_KC)
    E(f"s_mul_i32 {s(S_XB)}, {s(S_P)}, {192*2048}\ns_mul_i32 {s(S_T0)}, {s(S_LW)}, 48")
    for j in range(2):
        E(f"v_add_u32 {v(L2)}, {4*j}, {v(L0)}\nv_xor_b32 {v(L2)}, {v(L2)}, {L}\nv_and_b32 {v(L2)}, 7, {v(L2)}\nv_lshlrev_b32 {v(L2)}, 4, {v(L2)}")
        E(f"v_lshrrev_b32 {v(LX+j)}, 3, {L}\nv_add_u32 {v(LX+j)}, {s(S_T0)}, {v(LX+j)}\nv_lshl_add_u32 {v(LX+j)}, {v(LX+j)}, 11, {v(L2)}")
    for j in range(5, 0, -1): E(f"v_add_u32 {v(LX+j)}, {8*j*2048 - 1024*(j&3)}, {v(LX+(j&1))}")
    issue_x(E, vm, 0, 128, SRD_X, cfg.x_flag, S_KC); adv(E, S_KC)
    def qstage(st):
        issue_w(E, vm, st, 8192, cfg.w_flag, S_KC); issue_x(E, vm, st, 128, SRD_X, cfg.x_flag, S_KC); adv(E, S_KC)
    srd(E, SRD_K, 6, 1 << 25); srd(E, SRD_V, 8, 1 << 25)
    E(f"s_lshl_b32 {s(S_T0)}, {s(S_P)}, 1\ns_lshr_b32 {s(S_T1)}, {s(S_LW)}, 1\ns_add_u32 {s(S_T0)}, {s(S_T0)}, {s(S_T1)}\ns_lshl_b32 {s(S_T0)}, {s(S_T0)}, 5\ns_add_u32 {s(S_KVB)}, {s(S_KVB)}, {s(S_T0)}")
    E(f"s_lshl_b32 {s(S_KVB)}, {s(S_KVB)}, 17\ns_and_b32 {s(S_T0)}, {s(S_LW)}, 1\ns_lshl_b32 {s(S_T0)}, {s(S_T0)}, 13\ns_add_u32 {s(S_KVB)}, {s(S_KVB)}, {s(S_T0)}")
    for j in range(4):
        E(f"v_or_b32 {v(L2)}, {4*j}, {v(L0)}\nv_xor_b32 {v(L2)}, {v(L2)}, {v(L1)}\nv_lshlrev_b32 {v(L2)}, 4, {v(L2)}\nv_lshl_add_u32 {v(LK+j)}, {v(L0)}, 8, {v(L2)}")
    for j in range(2):
        E(f"v_or_b32 {v(L2)}, {4*j}, {v(L0)}\nv_lshlrev_b32 {v(L2)}, 1, {v(L2)}\nv_xor_b32 {v(L2)}, {v(L2)}, {v(L1)}\nv_lshlrev_b32 {v(L2)}, 4, {v(L2)}\nv_lshl_add_u32 {v(LV+j)}, {v(L0)}, 8, {v(L2)}")
    E(f"s_lshl_b32 {s(S_T0)}, {s(S_LW)}, 13\nv_lshl_add_u32 {v(LL)}, {L}, 4, {s(S_T0)}\nv_add_u32 {v(LL+6)}, {2*SLOT}, {v(LL)}")
    E(f"s_lshr_b32 {s(S_CLS)}, s2, 3\ns_mul_i32 {s(S_T0)}, {s(S_CLS)}, {-(-65536//cfg.bper)}\ns_lshr_b32 {s(S_T0)}, {s(S_T0)}, 16\ns_mul_i32 {s(S_T0)}, {s(S_T0)}, {cfg.bper}\ns_sub_u32 {s(S_CLS)}, {s(S_CLS)}, {s(S_T0)}")
    qstage(1)
    assert cfg.bfirst + cfg.nburst * cfg.bper <= 14 and cfg.nburst <= NGRP
    for i in range(14):
        vm.wait(("X", i)); E("s_barrier")
        qstage(i + 2)
        k, c = divmod(i - cfg.bfirst, cfg.bper)
        if i >= cfg.bfirst and k < cfg.nburst:
            E(f"s_cmp_lg_u32 {s(S_CLS)}, {c}\ns_cbranch_scc1 L_nb{i}")
            for j in range(8): kv_load(E, vm, cfg, k, j, False, count=False)
            E.label(f"L_nb{i}")
            vm.mark[("T", k)] = vm.n
    todo = [(n, j) for n in range(cfg.nburst, 16) for j in range(8)]
    written = -1
    def take(cnt):
        first = True
        while cnt and todo and todo[0][0] - NGRP <= written:
            n, j = todo.pop(0); kv_load(E, vm, cfg, n, j, first); first = False; cnt -= 1
    for i in range(14, 32):
        if i < 16: vm.wait(("X", i))
        E("s_barrier")
        if i == 14:
            srd(E, SRD_W, 12, 4096*2048)
            E(f"s_lshl_b32 {s(S_T0)}, {s(S_BR)}, 2\ns_add_u32 {s(S_T0)}, {s(S_T0)}, {s(S_P)}\ns_lshl_b32 {s(S_T3)}, {s(S_T0)}, 2\nv_mov_b32 {v(L2)}, 0")
            vm.op(f"buffer_load_dword {v(LF+4)}, {v(L2)}, {s(SRD_D,4)}, {s(S_T3)} offen sc1", "cnt")
        n = i + 1 - 16
        must = sum(1 for t, _ in todo if t <= n)
        take(max(cfg.kvper, must))
        if i == 16:
            vm.wait("cnt")
            E.label("L_cnt")
            E(f"v_readfirstlane_b32 {s(S_T0)}, {v(LF+4)}\ns_cmp_eq_u32 {s(S_T0)}, 32\ns_cbranch_scc1 L_cnt_done")
            E(f"v_mov_b32 {v(L2)}, 0\ns_sleep 2\nbuffer_load_dword {v(LF+4)}, {v(L2)}, {s(SRD_D,4)}, {s(S_T3)} offen sc1\ns_waitcnt vmcnt(0)\ns_sub_u32 {s(S_SPIN)}, {s(S_SPIN)}, 1\ns_cbranch_scc0 L_cnt\ns_mov_b32 {s(S_SPIN)}, 0")
            E.label("L_cnt_done")
        if i == 17:
            w_offsets(E, 2048, False)
            for j in range(6):
                E(f"v_lshlrev_b32 {v(LX+j)}, 4, {L}")
                if j >= 4: E(f"v_add_u32 {v(LX+j)}, 4096, {v(LX+j)}")
            E(f"s_lshl_b32 {s(S_WB)}, {s(S_HG)}, 21\ns_lshl_b32 {s(S_T0)}, {s(S_NT)}, 8\ns_add_u32 {s(S_WB)}, {s(S_WB)}, {s(S_T0)}")
            E(f"s_lshl_b32 {s(S_T0)}, {s(S_BR)}, 2\ns_add_u32 {s(S_T0)}, {s(S_T0)}, {s(S_P)}\ns_lshl_b32 {s(S_T0)}, {s(S_T0)}, 2\ns_add_u32 {s(S_T0)}, {s(S_T0)}, {s(S_LW)}")
            E(f"s_lshl_b32 {s(S_T0)}, {s(S_T0)}, 2\ns_add_u32 {s(S_T0)}, {s(S_T0)}, {s(S_HG)}\ns_mul_i32 {s(S_XB)}, {s(S_T0)}, {8*12288}\ns_add_u32 {s(S_XB)}, {s(S_XB)}, {WS_O}")
            E(f"s_lshl_b32 {s(S_KC)}, {s(S_J7)}, 1\ns_add_u32 {s(S_CNT)}, {s(S_KC)}, 2\ns_and_b32 {s(S_CNT)}, {s(S_CNT)}, 15")
            E(f"s_and_b32 {s(S_T0)}, s2, 0xc7\ns_lshl_b32 {s(S_T0)}, {s(S_T0)}, 3\ns_add_u32 {s(S_T0)}, {s(S_T0)}, {s(S_LW)}\ns_lshl_b32 {s(S_T0)}, {s(S_T0)}, 7\ns_add_u32 {s(S_T3)}, {s(S_T0)}, {WS_F}")
            E(f"v_and_b32 {v(LF)}, 7, {L}\nv_lshlrev_b32 {v(LF)}, 13, {v(LF)}\ns_lshl_b32 {s(S_T0)}, {s(S_J7)}, 13\nv_mov_b32 {v(LF+4)}, {s(S_T0)}\ns_mov_b32 {s(S_MASK)}, 0")
        if i >= 30:
            issue_w(E, vm, i + 2, 2048, cfg.wo_flag, S_KC); adv(E, S_KC)
        if 0 <= n < 16:
            vm.wait(("T", n))
            sl = n % 4
            for j in range(8): E(f"ds_write_b128 {v(LL if sl < 2 else LL+6)}, {v(tile_reg(n,j),4)} offset:{(sl&1)*SLOT + 1024*j}")
            E("s_waitcnt lgkmcnt(0)")
            written = n
    assert not todo
    E("s_barrier")
    issue_w(E, vm, 34, 2048, cfg.wo_flag, S_KC); adv(E, S_KC)
    E(f"v_lshl_add_u32 {v(LL)}, {L}, 4, {s(S_M0X)}")
    E(f"s_mul_i32 {s(S_KVB)}, {s(S_J7)}, 12288\ns_add_u32 {s(S_KVB)}, {s(S_KVB)}, {s(S_XB)}")
    vm.wait(("W", 32)); E("s_barrier")
    for n in range(12): E(f"ds_read_b128 {v(32+4*n,4)}, {v(LL)} offset:{(n//6)*SLOT + (n%6)*1024}")
    for n in range(12):
        if n and n % 4 == 0: E(f"s_add_u32 {s(S_KVB)}, {s(S_KVB)}, 4096")
        vm.op(f"buffer_store_dwordx4 {v(32+4*n,4)}, {v(LX)}, {s(SRD_S,4)}, {s(S_KVB)} offen offset:{1024*(n%4)} sc1", "O")
    issue_w(E, vm, 35, 2048, cfg.wo_flag, S_KC); adv(E, S_KC)
    vm.wait(("W", 33)); E("s_barrier")
    E(f"v_mov_b32 {v(L2)}, 1\ns_mov_b64 exec, 1\ns_waitcnt vmcnt(0)")
    vm.op(f"buffer_store_dword {v(L2)}, {v(LF+4)}, {s(SRD_S,4)}, {s(S_T3)} offen sc1")
    E("s_mov_b64 exec, -1")
    def need_head(tag):
        E(f"s_lshr_b32 {s(S_T0)}, {s(S_CNT)}, 1")
        E.label(f"L_p{tag}")
        E(f"s_bitcmp1_b32 {s(S_MASK)}, {s(S_T0)}\ns_cbranch_scc1 L_pd{tag}")
        E(f"s_mov_b64 exec, 0xff\nbuffer_load_dword {v(L2)}, {v(LF)}, {s(SRD_S,4)}, {s(S_T3)} offen sc1\ns_waitcnt vmcnt(0)\nv_cmp_ne_u32 vcc, 0, {v(L2)}\ns_mov_b64 exec, -1\ns_nop 2\ns_mov_b32 {s(S_MASK)}, vcc_lo\ns_sub_u32 {s(S_SPIN)}, {s(S_SPIN)}, 1\ns_cbranch_scc0 L_p{tag}\ns_mov_b32 {s(S_SPIN)}, 0")
        E.label(f"L_pd{tag}")
    need_head(34)
    for st in (34, 35):
        issue_x(E, vm, st, 6144, SRD_S, " sc1", S_CNT); adv(E, S_CNT)
    for i in range(34, 48):
        vm.wait(("X", i)); E("s_barrier")
        st = i + 2
        if st < 48:
            issue_w(E, vm, st, 2048, cfg.wo_flag, S_KC); adv(E, S_KC)
            if st % 2 == 0: need_head(st)
            issue_x(E, vm, st, 6144, SRD_S, " sc1", S_CNT); adv(E, S_CNT)
    E("s_barrier")

def kernel(E, cfg):
    L = v(V_LANE)
    E.raw(f".globl {KN}\n.p2align 8\n.type {KN},@function\n{KN}:")
    E(f"s_cmp_ge_u32 s2, 256\ns_cbranch_scc1 L_end_k")
    E("s_load_dwordx16 s[4:19], s[0:1], 0\ns_load_dwordx8 s[20:27], s[0:1], 64\ns_load_dwordx2 s[28:29], s[0:1], 96")
    stamp(E, cfg, 0)
    E(f"v_lshrrev_b32 v2, 6, v0\nv_and_b32 {L}, 63, v0\nv_readfirstlane_b32 {s(S_WAVE)}, v2")
    E(f"s_bfe_u32 {s(S_BR)}, s2, 0x10002\ns_and_b32 {s(S_HG)}, s2, 3\ns_bfe_u32 {s(S_J7)}, s2, 0x30003\ns_lshr_b32 {s(S_P)}, s2, 6")
    E(f"s_lshl_b32 {s(S_NT)}, {s(S_P)}, 1\ns_add_u32 {s(S_NT)}, {s(S_NT)}, {s(S_J7)}\ns_and_b32 {s(S_NT)}, {s(S_NT)}, 7")
    E(f"s_mov_b32 {s(S_SPIN)}, 0x100000\ns_waitcnt lgkmcnt(0)")
    E(f"s_cmp_eq_u32 {s(S_BR)}, 0")
    for i in range(5): E(f"s_cselect_b64 {s(4+2*i,2)}, {s(4+2*i,2)}, {s(14+2*i,2)}")
    srd(E, SRD_S, 28, 1 << 28); srd(E, SRD_D, 26, 256)
    E(f"s_cmp_ge_u32 {s(S_WAVE)}, 4\ns_cbranch_scc1 L_k_loader")
    E(f"s_cmp_lg_u32 {s(S_WAVE)}, 0\ns_cbranch_scc1 L_noclear")
    E(f"v_lshlrev_b32 v2, 7, {L}\nv_mov_b32 v3, 0\nv_mov_b32 v4, 1\ns_lshl_b32 {s(S_T0)}, s2, 10\ns_add_u32 {s(S_T0)}, {s(S_T0)}, {WS_F}")
    E(f"s_lshl_b32 {s(S_T1)}, {s(S_BR)}, 2\ns_add_u32 {s(S_T1)}, {s(S_T1)}, {s(S_P)}\ns_lshl_b32 {s(S_T1)}, {s(S_T1)}, 2")
    E(f"s_mov_b64 exec, 0xff\nbuffer_store_dword v3, v2, {s(SRD_S,4)}, {s(S_T0)} offen sc1\ns_mov_b64 exec, 1\ns_waitcnt vmcnt(0)")
    E(f"buffer_atomic_add v4, v3, {s(SRD_D,4)}, {s(S_T1)} offen sc1\ns_mov_b64 exec, -1")
    E.label("L_noclear")
    a_addr_init(E, "0")
    E(f"s_mul_i32 {s(S_T0)}, {s(S_WAVE)}, 6144\ns_add_u32 {s(S_T0)}, {s(S_T0)}, 16384")
    E(f"v_and_b32 {v(TA)}, 15, {L}\nv_lshrrev_b32 {v(TB)}, 1, {v(TA)}\nv_lshrrev_b32 {v(TC)}, 4, {L}\nv_xor_b32 {v(TB)}, {v(TB)}, {v(TC)}\nv_lshlrev_b32 {v(TB)}, 4, {v(TB)}")
    E(f"v_lshl_add_u32 {v(TB)}, {v(TA)}, 7, {v(TB)}\nv_add_u32 {v(V_B)}, {s(S_T0)}, {v(TB)}\nv_xor_b32 {v(V_B+1)}, 64, {v(V_B)}")
    zero_acc(E)
    E(f"s_mov_b32 {s(S_PH)}, 0")
    E.label("L_gemm_entry")
    gemm(E)
    E(f"s_cmp_eq_u32 {s(S_PH)}, 1\ns_cbranch_scc1 L_final")
    st = E.state()
    stamp(E, cfg, 1)
    attention(E, cfg)
    E.set_state(st)
    E.label("L_final")
    final(E, cfg)
    E.set_state(([], []))
    loader(E, cfg)
    E.label("L_end_k")
    E("s_endpgm")

def build(cfg):
    out = ("; Fused Q projection, attention and output projection; one workgroup per CU\n"
           "; @launch grid=(256,1,1) block=(512,1,1) lds=163840\n"
           '.amdgcn_target "amdgcn-amd-amdhsa--gfx950"\n.text\n')
    E = Emitter(); kernel(E, cfg); out += E.text()
    out += ('.section .rodata,"a"\n'
            f".p2align 6\n.amdhsa_kernel {KN}\n  .amdhsa_next_free_vgpr 256\n  .amdhsa_next_free_sgpr 102\n  .amdhsa_accum_offset 256\n"
            "  .amdhsa_group_segment_fixed_size 0\n  .amdhsa_kernarg_size 104\n  .amdhsa_user_sgpr_count 2\n  .amdhsa_user_sgpr_kernarg_segment_ptr 1\n"
            "  .amdhsa_system_sgpr_workgroup_id_x 1\n.end_amdhsa_kernel\n")
    return out

def parse(args):
    kw = dict(a.split("=", 1) for a in args)
    for k in kw:
        if kw[k] in ("True", "False"): kw[k] = kw[k] == "True"
        elif kw[k].isdigit(): kw[k] = int(kw[k])
        elif kw[k]: kw[k] = " " + kw[k].replace("+", " ")
    return kw

if __name__ == "__main__":
    kw = parse(sys.argv[2:])
    tr = kw.pop("trace", False)
    txt = build(Cfg(**kw))
    if tr:
        from trace import add_trace
        txt = add_trace(txt, ["k"])
    open(sys.argv[1], "w").write(txt)
```

```python
import math, struct, sys
from emit import *

NAME = "concat_heads__mha_block_cached__gqa_block_cached__near_ridge"
KN = NAME + "_kernel"
SLOT = 40960
WS_O, WS_P, WS_F, WS_T = 0, 16 << 20, 32 << 20, 64 << 20
C_SCALE = struct.unpack("<I", struct.pack("<f", math.log2(math.e) / math.sqrt(128.0)))[0]
THRESH = 0x47800000

SRD_X, SRD_W, SRD_K, SRD_V, SRD_S, SRD_D = 32, 36, 40, 44, 48, 72
S_WAVE, S_BR, S_HG, S_J7, S_P = 52, 53, 54, 55, 56
S_T0, S_T1, S_LW, S_CNT, S_PH, S_KC, S_WB, S_XB, S_DELTA, S_KVB, S_NT = 57, 58, 59, 60, 61, 62, 63, 64, 65, 66, 67
S_C = 68
S_MASK, S_CLS = 70, 71
S_M0W, S_M0X, S_T3, S_SPIN = 76, 77, 78, 79
S_TS = 80

V_LANE = 1
V_A, V_B, V_K, V_NM = 4, 12, 12, 16
V_L = [2, 28, 30]
V_F, V_ACC, V_Q, V_S = 32, 64, 160, 208
TA, TB, TC = 244, 245, 246

def acc(t, qt): return V_ACC + (t * 3 + qt) * 4
def frag(n): return V_F + (n % 8) * 4
def sreg(kt, qt): return V_S + (kt * 3 + qt) * 4
def qreg(qt, j): return V_Q + (qt * 4 + j) * 4
def breg(st, qt): return V_S + (st * 3 + qt) * 4
MF = "v_mfma_f32_16x16x32_bf16"

class Cfg:
    kv_flag = " nt"; w_flag = ""; x_flag = ""; wo_flag = ""; out_st = ""
    rot = 8
    nburst = 5; bper = 2; bfirst = 3
    kvper = 6
    stamps = False; encode = -1
    def __init__(self, **kw): self.__dict__.update(kw)

def srd(E, d, base, nbytes):
    E(f"s_mov_b32 {s(d)}, {s(base)}\ns_and_b32 {s(d+1)}, {s(base+1)}, 0xffff\ns_mov_b32 {s(d+2)}, {nbytes}\ns_mov_b32 {s(d+3)}, 0x20000")

def stamp(E, cfg, i):
    if cfg.stamps: E(f"s_memrealtime {s(S_TS+2*i,2)}")

def stamps_out(E, cfg, n):
    if not cfg.stamps: return
    E("s_waitcnt lgkmcnt(0)")
    if cfg.encode >= 0:
        E(f"s_sub_u32 {s(S_T0)}, {s(S_TS+2*cfg.encode)}, {s(S_TS)}\ns_lshl_b32 {s(S_T0)}, {s(S_T0)}, 2\ns_add_u32 {s(S_T0)}, {s(S_T0)}, 10000")
        E.label("L_enc")
        E(f"s_sleep 4\ns_memrealtime s[96:97]\ns_waitcnt lgkmcnt(0)\ns_sub_u32 s96, s96, {s(S_TS)}\ns_cmp_lt_u32 s96, {s(S_T0)}\ns_cbranch_scc1 L_enc")
        return
    E(f"s_lshl_b32 {s(S_T0)}, s2, 3\ns_add_u32 {s(S_T0)}, {s(S_T0)}, {s(S_WAVE)}\ns_lshl_b32 {s(S_T0)}, {s(S_T0)}, 7\ns_add_u32 {s(S_T0)}, {s(S_T0)}, {WS_T}")
    E(f"v_mov_b32 v2, 0")
    for i in range(n):
        E(f"v_mov_b32 v4, {s(S_TS+2*i)}\nv_mov_b32 v5, {s(S_TS+2*i+1)}")
        E(f"buffer_store_dwordx2 v[4:5], v2, {s(SRD_S,4)}, {s(S_T0)} offen offset:{8*i}")
        E("s_nop 1")

def put(fill, i, *items): fill.setdefault(i, []).extend(items)

def a_addr_init(E, base_s, xor_s=None):
    L = v(V_LANE)
    E(f"v_lshrrev_b32 {v(TA)}, 2, {L}\nv_and_b32 {v(TB)}, 7, {v(TA)}\nv_lshlrev_b32 {v(TB)}, 5, {v(TB)}\nv_lshl_add_u32 {v(TB)}, {v(TA)}, 8, {v(TB)}")
    E(f"v_and_b32 {v(TC)}, 3, {L}\nv_lshl_add_u32 {v(TB)}, {v(TC)}, 3, {v(TB)}")
    E(f"v_xor_b32 {v(V_A)}, {xor_s}, {v(TB)}" if xor_s else f"v_add_u32 {v(V_A)}, {base_s}, {v(TB)}")
    for t in range(1, 8): E(f"v_xor_b32 {v(V_A+t)}, {t<<5}, {v(V_A)}")

def rd_a(n):
    st, t = (n >> 3) & 1, n & 7
    return [f"ds_read_b64_tr_b16 {v(frag(n),2)}, {v(V_A+t)} offset:{st*8192}",
            f"ds_read_b64_tr_b16 {v(frag(n)+2,2)}, {v(V_A+t)} offset:{st*8192+4096}"]
def rd_b(st): return [f"ds_read_b128 {v(breg(st,qt),4)}, {v(V_B+st)} offset:{qt*2048}" for qt in range(3)]
def rd_k(n): return [f"ds_read_b128 {v(frag(n),4)}, {v(V_K+(n&3))} offset:{(n>>2)*4096}"]

def gemm(E):
    E("s_barrier")
    b0 = rd_b(0)
    for n in range(6):
        for t in rd_a(n): E(t)
        if n < 3: E(b0[n])
    E(f"s_mov_b32 {s(S_CNT)}, 0\ns_mov_b32 {s(S_T1)}, {SLOT}")
    def body():
        mf = [f"{MF} {v(acc(n&7,qt),4)}, {v(frag(n),4)}, {v(breg(n>>3,qt),4)}, {v(acc(n&7,qt),4)}" for n in range(16) for qt in range(3)]
        fill = {}
        put(fill, 2, f"s_add_u32 {s(S_CNT)}, {s(S_CNT)}, 1", f"s_and_b32 {s(S_T0)}, {s(S_CNT)}, 3")
        put(fill, 5, f"s_cselect_b32 {s(S_DELTA)}, {s(S_T1)}, {(-3*SLOT) & 0xffffffff}")
        put(fill, 29, "s_barrier")
        for n in range(16):
            a = rd_a(n + 6)
            put(fill, 3*n, a[0]); put(fill, 3*n+1, a[1])
        for k, t in enumerate(rd_b(1)): put(fill, 3*k+5, t)
        for k, t in enumerate(b0): put(fill, 3*k+32, t)
        add = lambda r: f"v_add_u32 {v(r)}, {s(S_DELTA)}, {v(r)}"
        for t in range(8): put(fill, 3*(t+3)+1, add(V_A+t))
        put(fill, 17, add(V_B)); put(fill, 20, add(V_B+1))
        interleave(E, mf, fill)
    E.loop("L_gemm", body, f"s_cmp_lt_u32 {s(S_CNT)}, 16\ns_cbranch_scc1 L_gemm")
    E("s_waitcnt lgkmcnt(0)")

def zero_acc(E):
    for r in range(V_ACC, V_ACC + 96, 2): E(f"v_mov_b64 {v(r,2)}, 0")

def xlane(E, op, regs, tmp):
    for sw in ("v_permlane32_swap_b32", "v_permlane16_swap_b32"):
        for r, t in zip(regs, tmp): E(f"v_mov_b32 {v(t)}, {v(r)}")
        for r, t in zip(regs, tmp): E(f"{sw} {v(t)}, {v(r)}")
        for r, t in zip(regs, tmp): E(f"{op} {v(r)}, {v(r)}, {v(t)}")

SUM = [V_F, V_F + 2, V_F + 4]
def sum_ops(kts):
    out = []
    for kt in kts:
        for h in range(2):
            for qt in range(3):
                r = sreg(kt, qt)
                if kt == 0 and h == 0: continue
                if kt == 0: out.append(f"v_pk_add_f32 {v(SUM[qt],2)}, {v(r,2)}, {v(r+2,2)}")
                else: out.append(f"v_pk_add_f32 {v(SUM[qt],2)}, {v(SUM[qt],2)}, {v(r+2*h,2)}")
    return out
def cvt_ops(kts):
    return [f"v_cvt_pk_bf16_f32 {v(sreg(kt&2,qt)+2*(kt&1)+h)}, {v(sreg(kt,qt)+2*h)}, {v(sreg(kt,qt)+2*h+1)}" for kt in kts for h in range(2) for qt in range(3)]
def exp_ops(kt): return [f"v_exp_f32 {v(sreg(kt,qt)+i)}, {v(sreg(kt,qt)+i)}" for qt in range(3) for i in range(4)]
def qk_mfmas(cinit):
    return [f"{MF} {v(sreg(n>>2,qt),4)}, {v(frag(n),4)}, {v(qreg(qt,n&3),4)}, {v(sreg(n>>2,qt),4) if n&3 else cinit(qt)}" for n in range(16) for qt in range(3)]

def attention(E, cfg):
    L = v(V_LANE)
    E(f"s_mov_b32 {s(S_C)}, {C_SCALE}\ns_mov_b32 {s(S_C+1)}, {C_SCALE}")
    E(f"s_lshr_b32 {s(S_T0)}, {s(S_WAVE)}, 1\ns_lshl_b32 {s(S_T0)}, {s(S_T0)}, 14")
    E(f"v_lshrrev_b32 {v(TA)}, 4, {L}\nv_and_b32 {v(TB)}, 1, {v(TA)}\nv_lshrrev_b32 {v(TA)}, 1, {v(TA)}\nv_lshl_or_b32 {v(TA)}, {v(TB)}, 1, {v(TA)}")
    E(f"v_and_b32 {v(TB)}, 15, {L}\nv_xor_b32 {v(TA)}, {v(TA)}, {v(TB)}\nv_lshlrev_b32 {v(TA)}, 4, {v(TA)}\nv_lshl_add_u32 {v(TA)}, {v(TB)}, 8, {v(TA)}\nv_add_u32 {v(V_K)}, {s(S_T0)}, {v(TA)}")
    for j in range(1, 4): E(f"v_xor_b32 {v(V_K+j)}, {j<<6}, {v(V_K)}")
    E(f"s_add_u32 {s(S_T0)}, {s(S_T0)}, {SLOT}")
    a_addr_init(E, s(S_T0))
    for qt in range(3):
        E(f"v_mov_b32 {v(V_NM+4*qt)}, 0x7f800000\nv_mov_b64 {v(V_L[qt],2)}, 0")
    for j in range(4):
        for qt in range(3):
            q = qreg(qt, j)
            for e in range(2):
                a = acc(2*j+e, qt)
                for h in range(2): E(f"v_pk_mul_f32 {v(a+2*h,2)}, {v(a+2*h,2)}, {s(S_C,2)}")
            for e in range(2):
                a = acc(2*j+e, qt)
                E(f"v_cvt_pk_bf16_f32 {v(q+2*e)}, {v(a)}, {v(a+1)}\nv_cvt_pk_bf16_f32 {v(q+2*e+1)}, {v(a+2)}, {v(a+3)}")
    for qt in range(3):
        for j in range(4):
            q = qreg(qt, j)
            E(f"v_permlane16_swap_b32 {v(q)}, {v(q+2)}\nv_permlane16_swap_b32 {v(q+1)}, {v(q+3)}")
    E(f"s_mov_b32 {s(S_CNT)}, 0\ns_mov_b32 {s(S_DELTA)}, {2*SLOT}\ns_mov_b32 {s(S_T3)}, {THRESH}")
    prek = sum([rd_k(n) for n in range(6)], [])
    E.label("L_exact")
    E("s_nop 7")
    for t in prek: E(t)
    fill = {}
    for n in range(10): put(fill, 3*n, *rd_k(n + 6))
    interleave(E, qk_mfmas(lambda qt: "0"), fill)
    MN = [V_F + 8, V_F + 10, V_F + 12]; AL = [V_F + 14, V_F + 16, V_F + 18]; TM = [V_F + 9, V_F + 11, V_F + 13]
    for kt in range(4):
        for h in range(2):
            for qt in range(3):
                src = f"-{v(V_NM+4*qt)}" if (kt == 0 and h == 0) else v(MN[qt])
                E(f"v_max3_f32 {v(MN[qt])}, {src}, {v(sreg(kt,qt)+2*h)}, {v(sreg(kt,qt)+2*h+1)}")
    xlane(E, "v_max_f32", MN, TM)
    for qt in range(3): E(f"v_sub_f32_e64 {v(AL[qt])}, -{v(V_NM+4*qt)}, {v(MN[qt])}")
    for qt in range(3): E(f"v_exp_f32 {v(AL[qt])}, {v(AL[qt])}")
    for qt in range(3):
        for i in range(4): E(f"v_sub_f32 {v(V_NM+4*qt+i)}, 0, {v(MN[qt])}")
    for kt in range(4):
        for qt in range(3):
            for h in range(2): E(f"v_pk_add_f32 {v(sreg(kt,qt)+2*h,2)}, {v(sreg(kt,qt)+2*h,2)}, {v(V_NM+4*qt,2)}")
    for kt in range(4):
        for t in exp_ops(kt): E(t)
    for qt in range(3):
        E(f"v_pk_mul_f32 {v(V_L[qt],2)}, {v(V_L[qt],2)}, {v(AL[qt],2)} op_sel_hi:[1,0]")
        for t in range(8):
            for h in range(2):
                r = acc(t, qt) + 2*h
                E(f"v_pk_mul_f32 {v(r,2)}, {v(r,2)}, {v(AL[qt],2)} op_sel_hi:[1,0]")
    for t in sum_ops(range(4)) + cvt_ops([0, 1]): E(t)
    E("s_branch L_join")
    def body():
        fill = {}
        for n in range(10): put(fill, 3*n, *rd_k(n + 6))
        ex = exp_ops(0) + exp_ops(1) + exp_ops(2)
        for k, t in enumerate(ex): put(fill, min(14 + k, 47), t)
        interleave(E, qk_mfmas(lambda qt: v(V_NM+4*qt, 4)), fill)
        for t in sum_ops([0, 1]) + cvt_ops([0, 1]) + exp_ops(3) + sum_ops([2, 3]): E(t)
        E(f"v_max3_f32 {v(V_F+6)}, {v(SUM[0])}, {v(SUM[0]+1)}, {v(SUM[1])}\nv_max3_f32 {v(V_F+7)}, {v(SUM[1]+1)}, {v(SUM[2])}, {v(SUM[2]+1)}")
        E(f"v_max_f32 {v(V_F+6)}, {v(V_F+6)}, {v(V_F+7)}\nv_cmp_lt_f32 vcc, {s(S_T3)}, {v(V_F+6)}\ns_nop 4\ns_cbranch_vccnz L_exact")
        E.label("L_join")
        for qt in range(3): E(f"v_pk_add_f32 {v(V_L[qt],2)}, {v(V_L[qt],2)}, {v(SUM[qt],2)}")
        E("s_barrier")
        for n in range(6):
            for t in rd_a(n): E(t)
        for t in cvt_ops([2, 3]): E(t)
        mf = [f"{MF} {v(acc(n&7,qt),4)}, {v(frag(n),4)}, {v(sreg(2*(n>>3),qt),4)}, {v(acc(n&7,qt),4)}" for n in range(16) for qt in range(3)]
        fill = {}
        for n in range(10):
            a = rd_a(n + 6)
            put(fill, 3*n, a[0]); put(fill, 3*n+1, a[1])
        add = lambda r: f"v_add_u32 {v(r)}, {s(S_DELTA)}, {v(r)}"
        for j in range(4): put(fill, 2 + 3*j, add(V_K+j))
        for t in range(8): put(fill, 3*(t+3)+1, add(V_A+t))
        put(fill, 32, f"s_sub_u32 {s(S_DELTA)}, 0, {s(S_DELTA)}", f"s_add_u32 {s(S_CNT)}, {s(S_CNT)}, 1")
        put(fill, 29, "s_barrier")
        for k, t in enumerate(prek): put(fill, 30 + 3*k, t)
        interleave(E, mf, fill)
    E.lds = [set(Ins(t).writes) for t in prek]
    E.loop("L_attn", body, f"s_cmp_lt_u32 {s(S_CNT)}, 8\ns_cbranch_scc1 L_attn")
    E("s_waitcnt lgkmcnt(0)")
    stamp(E, cfg, 2)
    LS = [V_F, V_F + 2, V_F + 4]
    for qt in range(3): E(f"v_add_f32 {v(LS[qt])}, {v(V_L[qt])}, {v(V_L[qt]+1)}")
    xlane(E, "v_add_f32", LS, [V_F + 1, V_F + 3, V_F + 5])
    for qt in range(3): E(f"v_rcp_f32 {v(LS[qt])}, {v(LS[qt])}")
    E(f"s_mul_i32 {s(S_T0)}, {s(S_WAVE)}, 6144\ns_add_u32 {s(S_T0)}, {s(S_T0)}, 16384")
    E(f"v_lshl_add_u32 {v(V_B)}, {L}, 4, {s(S_T0)}\nv_add_u32 {v(V_B+1)}, 1024, {v(V_B)}")
    for jp in range(2):
        for qt in range(3):
            for jj in range(2):
                j = 2*jp + jj; d = V_Q + ((jp*3+qt)*2+jj)*4
                for e in range(2):
                    a = acc(2*j+e, qt)
                    for h in range(2): E(f"v_pk_mul_f32 {v(a+2*h,2)}, {v(a+2*h,2)}, {v(LS[qt],2)} op_sel_hi:[1,0]")
                for e in range(2):
                    a = acc(2*j+e, qt)
                    E(f"v_cvt_pk_bf16_f32 {v(d+2*e)}, {v(a)}, {v(a+1)}\nv_cvt_pk_bf16_f32 {v(d+2*e+1)}, {v(a+2)}, {v(a+3)}")
                E(f"ds_write_b128 {v(V_B)}, {v(d,4)} offset:{jp*SLOT + qt*2048 + jj*1024}")
    E(f"s_lshl_b32 {s(S_T0)}, {s(S_HG)}, 6")
    a_addr_init(E, None, s(S_T0))
    zero_acc(E)
    E(f"s_mov_b32 {s(S_PH)}, 1\ns_waitcnt lgkmcnt(0)")
    stamp(E, cfg, 3)
    E("s_branch L_gemm_entry")

def final(E, cfg):
    L = v(V_LANE)
    stamp(E, cfg, 4)
    E(f"s_lshl_b32 {s(S_T0)}, {s(S_BR)}, 2\ns_add_u32 {s(S_T0)}, {s(S_T0)}, {s(S_P)}\ns_lshl_b32 {s(S_T0)}, {s(S_T0)}, 3\ns_add_u32 {s(S_T0)}, {s(S_T0)}, {s(S_NT)}")
    E(f"s_mul_i32 {s(S_T0)}, {s(S_T0)}, {4*3*12288}\ns_mul_i32 {s(S_T1)}, {s(S_WAVE)}, 3072\ns_add_u32 {s(S_T0)}, {s(S_T0)}, {s(S_T1)}\ns_add_u32 {s(S_XB)}, {s(S_T0)}, {WS_P}")
    E(f"v_lshlrev_b32 v2, 4, {L}")
    for k in range(1, 4):
        E(f"s_xor_b32 {s(S_T0)}, {s(S_HG)}, {k}\ns_mul_i32 {s(S_T0)}, {s(S_T0)}, {3*12288}\ns_add_u32 {s(S_T0)}, {s(S_T0)}, {(k-1)*12288}\ns_add_u32 {s(S_T0)}, {s(S_T0)}, {s(S_XB)}")
        for qt in range(3):
            d = V_Q + ((k-1)*3+qt)*4
            for e in range(2):
                a = acc(2*k+e, qt)
                E(f"v_cvt_pk_bf16_f32 {v(d+2*e)}, {v(a)}, {v(a+1)}\nv_cvt_pk_bf16_f32 {v(d+2*e+1)}, {v(a+2)}, {v(a+3)}")
            E(f"buffer_store_dwordx4 {v(d,4)}, v2, {s(SRD_S,4)}, {s(S_T0)} offen offset:{qt*1024} sc1")
    E(f"v_and_b32 v3, 3, {L}\nv_xor_b32 v3, s2, v3\nv_lshlrev_b32 v3, 10, v3")
    E(f"s_lshl_b32 {s(S_T1)}, {s(S_WAVE)}, 7\ns_add_u32 {s(S_T1)}, {s(S_T1)}, {WS_F + 512}")
    E(f"s_mul_i32 {s(S_T0)}, {s(S_HG)}, {3*12288}\ns_add_u32 {s(S_XB)}, {s(S_XB)}, {s(S_T0)}")
    E(f"v_mov_b32 v4, 1")
    srd(E, SRD_X, 24, 768*4096)
    E(f"s_lshl_b32 {s(S_T0)}, {s(S_P)}, 2\ns_add_u32 {s(S_T0)}, {s(S_T0)}, {s(S_WAVE)}\ns_mul_i32 {s(S_WB)}, {s(S_T0)}, {48*4096}")
    E(f"s_lshl_b32 {s(S_T0)}, {s(S_BR)}, 3\ns_add_u32 {s(S_T0)}, {s(S_T0)}, {s(S_NT)}\ns_lshl_b32 {s(S_T0)}, {s(S_T0)}, 2\ns_add_u32 {s(S_T0)}, {s(S_T0)}, {s(S_HG)}\ns_lshl_b32 {s(S_T0)}, {s(S_T0)}, 6\ns_add_u32 {s(S_WB)}, {s(S_WB)}, {s(S_T0)}")
    E(f"v_lshrrev_b32 v6, 4, {L}\nv_and_b32 v7, 1, v6\nv_lshrrev_b32 v6, 1, v6\nv_lshl_or_b32 v6, v7, 1, v6\nv_lshlrev_b32 v6, 4, v6\nv_and_b32 v7, 15, {L}\nv_lshl_add_u32 v6, v7, 12, v6")
    E("s_mov_b64 exec, 1\ns_waitcnt vmcnt(0)")
    E(f"buffer_store_dword v4, v3, {s(SRD_S,4)}, {s(S_T1)} offen sc1")
    stamp(E, cfg, 5)
    E("s_mov_b64 exec, 14")
    E.label("L_poll2")
    E(f"buffer_load_dword v5, v3, {s(SRD_S,4)}, {s(S_T1)} offen sc1\ns_waitcnt vmcnt(0)\nv_cmp_eq_u32 vcc, 0, v5\ns_nop 4\ns_cbranch_vccz L_poll2_done\ns_sleep 1\ns_sub_u32 {s(S_SPIN)}, {s(S_SPIN)}, 1\ns_cbranch_scc0 L_poll2")
    E.label("L_poll2_done")
    E("s_mov_b64 exec, -1")
    stamp(E, cfg, 6)
    for k in range(3):
        for qt in range(3):
            E(f"buffer_load_dwordx4 {v(V_S+(k*3+qt)*4,4)}, v2, {s(SRD_S,4)}, {s(S_XB)} offen offset:{qt*1024} sc1")
        if k < 2: E(f"s_add_u32 {s(S_XB)}, {s(S_XB)}, 12288")
    E(f"s_mov_b32 {s(S_T0)}, 0xffff0000")
    for k in range(3):
        for qt in range(3):
            E(f"s_waitcnt vmcnt({8-3*k-qt})")
            for i in range(4):
                w = V_S + (k*3+qt)*4 + i; t = V_F + 2*i
                E(f"v_lshlrev_b32 {v(t)}, 16, {v(w)}\nv_and_b32 {v(t+1)}, {s(S_T0)}, {v(w)}")
            for i in range(4):
                a = acc(i >> 1, qt) + 2*(i & 1)
                E(f"v_pk_add_f32 {v(a,2)}, {v(a,2)}, {v(V_F+2*i,2)}")
    for qt in range(3):
        d = V_F + 8 + 4*qt
        for e in range(2):
            a = acc(e, qt)
            E(f"v_cvt_pk_bf16_f32 {v(d+2*e)}, {v(a)}, {v(a+1)}\nv_cvt_pk_bf16_f32 {v(d+2*e+1)}, {v(a+2)}, {v(a+3)}")
    for qt in range(3):
        d = V_F + 8 + 4*qt
        E(f"v_permlane16_swap_b32 {v(d)}, {v(d+2)}\nv_permlane16_swap_b32 {v(d+1)}, {v(d+3)}")
    for qt in range(3):
        E(f"buffer_store_dwordx4 {v(V_F+8+4*qt,4)}, v6, {s(SRD_X,4)}, {s(S_WB)} offen{cfg.out_st}")
        if qt < 2: E(f"s_add_u32 {s(S_WB)}, {s(S_WB)}, {16*4096}")
    if cfg.stamps:
        E("s_waitcnt vmcnt(0)"); stamp(E, cfg, 7); stamps_out(E, cfg, 8)
    E("s_endpgm")

LW, LX, LK, LV, LL, LF, L0, L1, L2 = 4, 8, 14, 18, 20, 21, 22, 23, 24
NGRP = 7
def tile_reg(n, j): return 32 + (n % NGRP) * 32 + 4 * j

class Vm:
    def __init__(self, E): self.E = E; self.n = 0; self.mark = {}
    def op(self, text, tag=None):
        self.E(text); self.n += 1
        if tag is not None: self.mark[tag] = self.n
    def wait(self, tag, slack=0):
        self.E(f"s_waitcnt vmcnt({max(0, min(63, self.n - self.mark[tag] - slack))})")

def w_offsets(E, ldw, qproj):
    L = v(V_LANE)
    E(f"v_lshrrev_b32 {v(L0)}, 4, {L}\nv_and_b32 {v(L1)}, 15, {L}")
    if qproj:
        E(f"s_lshr_b32 {s(S_T0)}, {s(S_LW)}, 1\ns_lshl_b32 {s(S_T0)}, {s(S_T0)}, 5\ns_and_b32 {s(S_T1)}, {s(S_LW)}, 1\ns_lshl_b32 {s(S_T1)}, {s(S_T1)}, 2\ns_add_u32 {s(S_T0)}, {s(S_T0)}, {s(S_T1)}")
    else:
        E(f"s_lshl_b32 {s(S_T0)}, {s(S_LW)}, 4")
    step, sh = (8 if qproj else 4), int(math.log2(ldw))
    for j in range(2):
        E(f"v_or_b32 {v(L2)}, {j<<2}, {v(L0)}\nv_lshlrev_b32 {v(L2)}, 1, {v(L2)}\nv_xor_b32 {v(L2)}, {v(L2)}, {v(L1)}\nv_lshlrev_b32 {v(L2)}, 4, {v(L2)}")
        E(f"v_add_u32 {v(LW+j)}, {s(S_T0)}, {v(L0)}\nv_lshl_add_u32 {v(LW+j)}, {v(LW+j)}, {sh}, {v(L2)}")
    E(f"v_add_u32 {v(LW+1)}, {step*ldw - 1024}, {v(LW+1)}")
    for j in range(2): E(f"v_add_u32 {v(LW+2+j)}, {2*(step*ldw - 1024)}, {v(LW+j)}")

def issue_w(E, vm, st, ldw, flag, kc):
    E(f"s_mul_i32 {s(S_T0)}, {s(kc)}, {64*ldw}\ns_add_u32 m0, {s(S_M0W)}, {(st%4)*SLOT}\ns_add_u32 {s(S_T0)}, {s(S_T0)}, {s(S_WB)}")
    for j in range(4): vm.op(f"buffer_load_dwordx4 {v(LW+j)}, {s(SRD_W,4)}, {s(S_T0)} offen offset:{1024*j}{flag} lds", ("W", st))
def issue_x(E, vm, st, xstep, srdx, flag, kc):
    E(f"s_mul_i32 {s(S_T1)}, {s(kc)}, {xstep}\ns_add_u32 m0, {s(S_M0X)}, {(st%4)*SLOT}\ns_add_u32 {s(S_T1)}, {s(S_T1)}, {s(S_XB)}")
    for j in range(6):
        if j == 4: E(f"s_add_u32 m0, {s(S_M0X)}, {(st%4)*SLOT + 4096}")
        vm.op(f"buffer_load_dwordx4 {v(LX+j)}, {s(srdx,4)}, {s(S_T1)} offen offset:{1024*(j&3)}{flag} lds", ("X", st))
def adv(E, kc): E(f"s_add_u32 {s(kc)}, {s(kc)}, 1\ns_and_b32 {s(kc)}, {s(kc)}, 15")

def kv_load(E, vm, cfg, n, j, first, count=True):
    if first or j == 0 or j == 4: E(f"s_add_u32 {s(S_T0)}, {s(S_KVB)}, {(n>>1)*16384 + (j>>2)*4096}")
    isv = n & 1
    r = LV + (j & 1) if isv else LK + (j & 3)
    t = f"buffer_load_dwordx4 {v(tile_reg(n,j),4)}, {v(r)}, {s(SRD_V if isv else SRD_K,4)}, {s(S_T0)} offen offset:{1024*(j&3)}{cfg.kv_flag}"
    if count: vm.op(t, ("T", n))
    else: E(t)

def loader(E, cfg):
    L = v(V_LANE)
    vm = Vm(E)
    E.label("L_k_loader")
    srd(E, SRD_X, 4, 768*2048); srd(E, SRD_W, 10, 1024*8192)
    E(f"s_sub_u32 {s(S_LW)}, {s(S_WAVE)}, 4")
    w_offsets(E, 8192, True)
    if cfg.rot == 8: E(f"s_lshl_b32 {s(S_KC)}, {s(S_P)}, 1\ns_add_u32 {s(S_KC)}, {s(S_KC)}, {s(S_J7)}\ns_lshl_b32 {s(S_KC)}, {s(S_KC)}, 1\ns_and_b32 {s(S_KC)}, {s(S_KC)}, 15")
    else: E(f"s_add_u32 {s(S_KC)}, {s(S_P)}, {s(S_J7)}\ns_mul_i32 {s(S_KC)}, {s(S_KC)}, {16//cfg.rot}\ns_and_b32 {s(S_KC)}, {s(S_KC)}, 15")
    E(f"s_lshl_b32 {s(S_KVB)}, {s(S_HG)}, 3\ns_add_u32 {s(S_KVB)}, {s(S_KVB)}, {s(S_J7)}\ns_lshl_b32 {s(S_WB)}, {s(S_KVB)}, 8")
    E(f"s_lshl_b32 {s(S_M0W)}, {s(S_LW)}, 12\ns_mul_i32 {s(S_M0X)}, {s(S_LW)}, 6144\ns_add_u32 {s(S_M0X)}, {s(S_M0X)}, 16384")
    issue_w(E, vm, 0, 8192, cfg.w_flag, S_KC)
    E(f"s_mul_i32 {s(S_XB)}, {s(S_P)}, {192*2048}\ns_mul_i32 {s(S_T0)}, {s(S_LW)}, 48")
    for j in range(2):
        E(f"v_add_u32 {v(L2)}, {4*j}, {v(L0)}\nv_xor_b32 {v(L2)}, {v(L2)}, {L}\nv_and_b32 {v(L2)}, 7, {v(L2)}\nv_lshlrev_b32 {v(L2)}, 4, {v(L2)}")
        E(f"v_lshrrev_b32 {v(LX+j)}, 3, {L}\nv_add_u32 {v(LX+j)}, {s(S_T0)}, {v(LX+j)}\nv_lshl_add_u32 {v(LX+j)}, {v(LX+j)}, 11, {v(L2)}")
    for j in range(5, 0, -1): E(f"v_add_u32 {v(LX+j)}, {8*j*2048 - 1024*(j&3)}, {v(LX+(j&1))}")
    issue_x(E, vm, 0, 128, SRD_X, cfg.x_flag, S_KC); adv(E, S_KC)
    def qstage(st):
        issue_w(E, vm, st, 8192, cfg.w_flag, S_KC); issue_x(E, vm, st, 128, SRD_X, cfg.x_flag, S_KC); adv(E, S_KC)
    srd(E, SRD_K, 6, 1 << 25); srd(E, SRD_V, 8, 1 << 25)
    E(f"s_lshl_b32 {s(S_T0)}, {s(S_P)}, 1\ns_lshr_b32 {s(S_T1)}, {s(S_LW)}, 1\ns_add_u32 {s(S_T0)}, {s(S_T0)}, {s(S_T1)}\ns_lshl_b32 {s(S_T0)}, {s(S_T0)}, 5\ns_add_u32 {s(S_KVB)}, {s(S_KVB)}, {s(S_T0)}")
    E(f"s_lshl_b32 {s(S_KVB)}, {s(S_KVB)}, 17\ns_and_b32 {s(S_T0)}, {s(S_LW)}, 1\ns_lshl_b32 {s(S_T0)}, {s(S_T0)}, 13\ns_add_u32 {s(S_KVB)}, {s(S_KVB)}, {s(S_T0)}")
    for j in range(4):
        E(f"v_or_b32 {v(L2)}, {4*j}, {v(L0)}\nv_xor_b32 {v(L2)}, {v(L2)}, {v(L1)}\nv_lshlrev_b32 {v(L2)}, 4, {v(L2)}\nv_lshl_add_u32 {v(LK+j)}, {v(L0)}, 8, {v(L2)}")
    for j in range(2):
        E(f"v_or_b32 {v(L2)}, {4*j}, {v(L0)}\nv_lshlrev_b32 {v(L2)}, 1, {v(L2)}\nv_xor_b32 {v(L2)}, {v(L2)}, {v(L1)}\nv_lshlrev_b32 {v(L2)}, 4, {v(L2)}\nv_lshl_add_u32 {v(LV+j)}, {v(L0)}, 8, {v(L2)}")
    E(f"s_lshl_b32 {s(S_T0)}, {s(S_LW)}, 13\nv_lshl_add_u32 {v(LL)}, {L}, 4, {s(S_T0)}\nv_add_u32 {v(LL+6)}, {2*SLOT}, {v(LL)}")
    E(f"s_lshr_b32 {s(S_CLS)}, s2, 3\ns_mul_i32 {s(S_T0)}, {s(S_CLS)}, {-(-65536//cfg.bper)}\ns_lshr_b32 {s(S_T0)}, {s(S_T0)}, 16\ns_mul_i32 {s(S_T0)}, {s(S_T0)}, {cfg.bper}\ns_sub_u32 {s(S_CLS)}, {s(S_CLS)}, {s(S_T0)}")
    qstage(1)
    assert cfg.bfirst + cfg.nburst * cfg.bper <= 14 and cfg.nburst <= NGRP
    for i in range(14):
        vm.wait(("X", i)); E("s_barrier")
        qstage(i + 2)
        k, c = divmod(i - cfg.bfirst, cfg.bper)
        if i >= cfg.bfirst and k < cfg.nburst:
            E(f"s_cmp_lg_u32 {s(S_CLS)}, {c}\ns_cbranch_scc1 L_nb{i}")
            for j in range(8): kv_load(E, vm, cfg, k, j, False, count=False)
            E.label(f"L_nb{i}")
            vm.mark[("T", k)] = vm.n
    todo = [(n, j) for n in range(cfg.nburst, 16) for j in range(8)]
    written = -1
    def take(cnt):
        first = True
        while cnt and todo and todo[0][0] - NGRP <= written:
            n, j = todo.pop(0); kv_load(E, vm, cfg, n, j, first); first = False; cnt -= 1
    for i in range(14, 32):
        if i < 16: vm.wait(("X", i))
        E("s_barrier")
        if i == 14:
            srd(E, SRD_W, 12, 4096*2048)
            E(f"s_lshl_b32 {s(S_T0)}, {s(S_BR)}, 2\ns_add_u32 {s(S_T0)}, {s(S_T0)}, {s(S_P)}\ns_lshl_b32 {s(S_T3)}, {s(S_T0)}, 2\nv_mov_b32 {v(L2)}, 0")
            vm.op(f"buffer_load_dword {v(LF+4)}, {v(L2)}, {s(SRD_D,4)}, {s(S_T3)} offen sc1", "cnt")
        n = i + 1 - 16
        must = sum(1 for t, _ in todo if t <= n)
        take(max(cfg.kvper, must))
        if i == 16:
            vm.wait("cnt")
            E.label("L_cnt")
            E(f"v_readfirstlane_b32 {s(S_T0)}, {v(LF+4)}\ns_cmp_ge_u32 {s(S_T0)}, 32\ns_cbranch_scc1 L_cnt_done")
            E(f"v_mov_b32 {v(L2)}, 0\ns_sleep 2\nbuffer_load_dword {v(LF+4)}, {v(L2)}, {s(SRD_D,4)}, {s(S_T3)} offen sc1\ns_waitcnt vmcnt(0)\ns_sub_u32 {s(S_SPIN)}, {s(S_SPIN)}, 1\ns_cbranch_scc0 L_cnt\ns_mov_b32 {s(S_SPIN)}, 0")
            E.label("L_cnt_done")
        if i == 17:
            w_offsets(E, 2048, False)
            for j in range(6):
                E(f"v_lshlrev_b32 {v(LX+j)}, 4, {L}")
                if j >= 4: E(f"v_add_u32 {v(LX+j)}, 4096, {v(LX+j)}")
            E(f"s_lshl_b32 {s(S_WB)}, {s(S_HG)}, 21\ns_lshl_b32 {s(S_T0)}, {s(S_NT)}, 8\ns_add_u32 {s(S_WB)}, {s(S_WB)}, {s(S_T0)}")
            E(f"s_lshl_b32 {s(S_T0)}, {s(S_BR)}, 2\ns_add_u32 {s(S_T0)}, {s(S_T0)}, {s(S_P)}\ns_lshl_b32 {s(S_T0)}, {s(S_T0)}, 2\ns_add_u32 {s(S_T0)}, {s(S_T0)}, {s(S_LW)}")
            E(f"s_lshl_b32 {s(S_T0)}, {s(S_T0)}, 2\ns_add_u32 {s(S_T0)}, {s(S_T0)}, {s(S_HG)}\ns_mul_i32 {s(S_XB)}, {s(S_T0)}, {8*12288}\ns_add_u32 {s(S_XB)}, {s(S_XB)}, {WS_O}")
            E(f"s_lshl_b32 {s(S_KC)}, {s(S_J7)}, 1\ns_add_u32 {s(S_CNT)}, {s(S_KC)}, 2\ns_and_b32 {s(S_CNT)}, {s(S_CNT)}, 15")
            E(f"s_and_b32 {s(S_T0)}, s2, 0xc7\ns_lshl_b32 {s(S_T0)}, {s(S_T0)}, 3\ns_add_u32 {s(S_T0)}, {s(S_T0)}, {s(S_LW)}\ns_lshl_b32 {s(S_T0)}, {s(S_T0)}, 7\ns_add_u32 {s(S_T3)}, {s(S_T0)}, {WS_F}")
            E(f"v_and_b32 {v(LF)}, 7, {L}\nv_lshlrev_b32 {v(LF)}, 13, {v(LF)}\ns_lshl_b32 {s(S_T0)}, {s(S_J7)}, 13\nv_mov_b32 {v(LF+4)}, {s(S_T0)}\ns_mov_b32 {s(S_MASK)}, 0")
        if i >= 30:
            issue_w(E, vm, i + 2, 2048, cfg.wo_flag, S_KC); adv(E, S_KC)
        if 0 <= n < 16:
            vm.wait(("T", n))
            sl = n % 4
            for j in range(8): E(f"ds_write_b128 {v(LL if sl < 2 else LL+6)}, {v(tile_reg(n,j),4)} offset:{(sl&1)*SLOT + 1024*j}")
            E("s_waitcnt lgkmcnt(0)")
            written = n
    assert not todo
    E("s_barrier")
    issue_w(E, vm, 34, 2048, cfg.wo_flag, S_KC); adv(E, S_KC)
    E(f"v_lshl_add_u32 {v(LL)}, {L}, 4, {s(S_M0X)}")
    E(f"s_mul_i32 {s(S_KVB)}, {s(S_J7)}, 12288\ns_add_u32 {s(S_KVB)}, {s(S_KVB)}, {s(S_XB)}")
    vm.wait(("W", 32)); E("s_barrier")
    for n in range(12): E(f"ds_read_b128 {v(32+4*n,4)}, {v(LL)} offset:{(n//6)*SLOT + (n%6)*1024}")
    for n in range(12):
        if n and n % 4 == 0: E(f"s_add_u32 {s(S_KVB)}, {s(S_KVB)}, 4096")
        vm.op(f"buffer_store_dwordx4 {v(32+4*n,4)}, {v(LX)}, {s(SRD_S,4)}, {s(S_KVB)} offen offset:{1024*(n%4)} sc1", "O")
    issue_w(E, vm, 35, 2048, cfg.wo_flag, S_KC); adv(E, S_KC)
    vm.wait(("W", 33)); E("s_barrier")
    E(f"v_mov_b32 {v(L2)}, 1\ns_mov_b64 exec, 1\ns_waitcnt vmcnt(0)")
    vm.op(f"buffer_store_dword {v(L2)}, {v(LF+4)}, {s(SRD_S,4)}, {s(S_T3)} offen sc1")
    E("s_mov_b64 exec, -1")
    def need_head(tag):
        E(f"s_lshr_b32 {s(S_T0)}, {s(S_CNT)}, 1")
        E.label(f"L_p{tag}")
        E(f"s_bitcmp1_b32 {s(S_MASK)}, {s(S_T0)}\ns_cbranch_scc1 L_pd{tag}")
        E(f"s_mov_b64 exec, 0xff\nbuffer_load_dword {v(L2)}, {v(LF)}, {s(SRD_S,4)}, {s(S_T3)} offen sc1\ns_waitcnt vmcnt(0)\nv_cmp_ne_u32 vcc, 0, {v(L2)}\ns_mov_b64 exec, -1\ns_nop 2\ns_mov_b32 {s(S_MASK)}, vcc_lo\ns_sub_u32 {s(S_SPIN)}, {s(S_SPIN)}, 1\ns_cbranch_scc0 L_p{tag}\ns_mov_b32 {s(S_SPIN)}, 0")
        E.label(f"L_pd{tag}")
    need_head(34)
    for st in (34, 35):
        issue_x(E, vm, st, 6144, SRD_S, " sc1", S_CNT); adv(E, S_CNT)
    for i in range(34, 48):
        vm.wait(("X", i)); E("s_barrier")
        st = i + 2
        if st < 48:
            issue_w(E, vm, st, 2048, cfg.wo_flag, S_KC); adv(E, S_KC)
            if st % 2 == 0: need_head(st)
            issue_x(E, vm, st, 6144, SRD_S, " sc1", S_CNT); adv(E, S_CNT)
    E("s_barrier")

def kernel(E, cfg):
    L = v(V_LANE)
    E.raw(f".globl {KN}\n.p2align 8\n.type {KN},@function\n{KN}:")
    E(f"s_cmp_ge_u32 s2, 256\ns_cbranch_scc1 L_end_k")
    E("s_load_dwordx16 s[4:19], s[0:1], 0\ns_load_dwordx8 s[20:27], s[0:1], 64\ns_load_dwordx2 s[28:29], s[0:1], 96")
    stamp(E, cfg, 0)
    E(f"v_lshrrev_b32 v2, 6, v0\nv_and_b32 {L}, 63, v0\nv_readfirstlane_b32 {s(S_WAVE)}, v2")
    E(f"s_bfe_u32 {s(S_BR)}, s2, 0x10002\ns_and_b32 {s(S_HG)}, s2, 3\ns_bfe_u32 {s(S_J7)}, s2, 0x30003\ns_lshr_b32 {s(S_P)}, s2, 6")
    E(f"s_lshl_b32 {s(S_NT)}, {s(S_P)}, 1\ns_add_u32 {s(S_NT)}, {s(S_NT)}, {s(S_J7)}\ns_and_b32 {s(S_NT)}, {s(S_NT)}, 7")
    E(f"s_mov_b32 {s(S_SPIN)}, 0x100000\ns_waitcnt lgkmcnt(0)")
    E(f"s_cmp_eq_u32 {s(S_BR)}, 0")
    for i in range(5): E(f"s_cselect_b64 {s(4+2*i,2)}, {s(4+2*i,2)}, {s(14+2*i,2)}")
    srd(E, SRD_S, 28, 1 << 28); srd(E, SRD_D, 26, 256)
    E(f"s_cmp_ge_u32 {s(S_WAVE)}, 4\ns_cbranch_scc1 L_k_loader")
    E(f"s_cmp_lg_u32 {s(S_WAVE)}, 0\ns_cbranch_scc1 L_noclear")
    E(f"v_lshlrev_b32 v2, 7, {L}\nv_mov_b32 v3, 0\nv_mov_b32 v4, 1\ns_lshl_b32 {s(S_T0)}, s2, 10\ns_add_u32 {s(S_T0)}, {s(S_T0)}, {WS_F}")
    E(f"s_lshl_b32 {s(S_T1)}, {s(S_BR)}, 2\ns_add_u32 {s(S_T1)}, {s(S_T1)}, {s(S_P)}\ns_lshl_b32 {s(S_T1)}, {s(S_T1)}, 2")
    E(f"s_mov_b64 exec, 0xff\nbuffer_store_dword v3, v2, {s(SRD_S,4)}, {s(S_T0)} offen sc1\ns_mov_b64 exec, 1\ns_waitcnt vmcnt(0)")
    E(f"buffer_atomic_add v4, v3, {s(SRD_D,4)}, {s(S_T1)} offen sc1\ns_mov_b64 exec, -1")
    E.label("L_noclear")
    a_addr_init(E, "0")
    E(f"s_mul_i32 {s(S_T0)}, {s(S_WAVE)}, 6144\ns_add_u32 {s(S_T0)}, {s(S_T0)}, 16384")
    E(f"v_and_b32 {v(TA)}, 15, {L}\nv_lshrrev_b32 {v(TB)}, 1, {v(TA)}\nv_lshrrev_b32 {v(TC)}, 4, {L}\nv_xor_b32 {v(TB)}, {v(TB)}, {v(TC)}\nv_lshlrev_b32 {v(TB)}, 4, {v(TB)}")
    E(f"v_lshl_add_u32 {v(TB)}, {v(TA)}, 7, {v(TB)}\nv_add_u32 {v(V_B)}, {s(S_T0)}, {v(TB)}\nv_xor_b32 {v(V_B+1)}, 64, {v(V_B)}")
    zero_acc(E)
    E(f"s_mov_b32 {s(S_PH)}, 0")
    E.label("L_gemm_entry")
    gemm(E)
    E(f"s_cmp_eq_u32 {s(S_PH)}, 1\ns_cbranch_scc1 L_final")
    st = E.state()
    stamp(E, cfg, 1)
    attention(E, cfg)
    E.set_state(st)
    E.label("L_final")
    final(E, cfg)
    E.set_state(([], []))
    loader(E, cfg)
    E.label("L_end_k")
    E("s_endpgm")

def build(cfg):
    out = ("; Fused Q projection, attention and output projection; one workgroup per CU\n"
           "; @launch grid=(256,1,1) block=(512,1,1) lds=163840\n"
           '.amdgcn_target "amdgcn-amd-amdhsa--gfx950"\n.text\n')
    E = Emitter(); kernel(E, cfg); out += E.text()
    out += ('.section .rodata,"a"\n'
            f".p2align 6\n.amdhsa_kernel {KN}\n  .amdhsa_next_free_vgpr 256\n  .amdhsa_next_free_sgpr 102\n  .amdhsa_accum_offset 256\n"
            "  .amdhsa_group_segment_fixed_size 0\n  .amdhsa_kernarg_size 104\n  .amdhsa_user_sgpr_count 2\n  .amdhsa_user_sgpr_kernarg_segment_ptr 1\n"
            "  .amdhsa_system_sgpr_workgroup_id_x 1\n.end_amdhsa_kernel\n")
    return out

def parse(args):
    kw = dict(a.split("=", 1) for a in args)
    for k in kw:
        if kw[k] in ("True", "False"): kw[k] = kw[k] == "True"
        elif kw[k].isdigit(): kw[k] = int(kw[k])
        elif kw[k]: kw[k] = " " + kw[k].replace("+", " ")
    return kw

if __name__ == "__main__":
    kw = parse(sys.argv[2:])
    tr = kw.pop("trace", False)
    txt = build(Cfg(**kw))
    if tr:
        from trace import add_trace
        txt = add_trace(txt, ["k"])
    open(sys.argv[1], "w").write(txt)
```

```python
import re, copy

def v(n, cnt=1):
    return f"v{n}" if cnt == 1 else f"v[{n}:{n+cnt-1}]"
def s(n, cnt=1):
    return f"s{n}" if cnt == 1 else f"s[{n}:{n+cnt-1}]"

_REG = re.compile(r"\b([vsa])(?:(\d+)|\[(\d+):(\d+)\])")
def regs_of(op):
    out = set()
    for m in _REG.finditer(op):
        k = m.group(1)
        if m.group(2) is not None:
            out.add(k + m.group(2))
        else:
            for i in range(int(m.group(3)), int(m.group(4)) + 1):
                out.add(k + str(i))
    if re.search(r"\bvcc\b", op): out.add("vcc")
    if re.search(r"\bm0\b", op): out.add("m0")
    if re.search(r"\bexec\b", op): out.add("exec")
    return out

TRANS = ("v_exp_f32", "v_rcp_f32", "v_log_f32", "v_rsq_f32", "v_sqrt_f32")

class Ins:
    __slots__ = ("text", "kind", "reads", "writes", "srcc", "passes", "states")
    def __init__(self, text):
        self.text = text
        mn, _, rest = text.partition(" ")
        ops = [o.strip() for o in rest.split(",")] if rest else []
        self.srcc = set(); self.passes = 0; self.states = 1
        R = lambda xs: set().union(*[regs_of(o) for o in xs]) if xs else set()
        if mn.startswith("v_mfma"):
            self.kind = "mfma"; self.writes = R(ops[:1]); self.reads = R(ops[1:]); self.srcc = R(ops[3:4])
            self.passes = 4 if "16x16" in mn else 8
        elif mn.startswith("v_permlane") and "swap" in mn:
            self.kind = "perm"; self.writes = R(ops); self.reads = R(ops)
        elif mn.startswith("v_readfirstlane") or mn.startswith("v_readlane"):
            self.kind = "readlane"; self.writes = R(ops[:1]); self.reads = R(ops[1:])
        elif mn.startswith("v_cmp"):
            self.kind = "valu"; self.writes = R(ops[:1]); self.reads = R(ops[1:])
        elif mn.startswith("v_"):
            self.kind = "trans" if mn.split("_e")[0] in TRANS or mn in TRANS else "valu"
            self.writes = R(ops[:1]); self.reads = R(ops[1:])
            if mn.startswith("v_fmac") or mn.startswith("v_pk_fmac"): self.reads |= self.writes
        elif mn.startswith("ds_read"):
            self.kind = "dsr"; self.writes = R(ops[:1]); self.reads = R(ops[1:])
        elif mn.startswith("ds_"):
            self.kind = "dsw"; self.writes = set(); self.reads = R(ops)
        elif mn.startswith("buffer_load") or mn.startswith("global_load"):
            if text.rstrip().endswith(" lds") or "_lds_" in mn:
                self.kind = "dma"; self.writes = set(); self.reads = R(ops) | {"m0"}
            else:
                self.kind = "vload"; self.writes = R(ops[:1]); self.reads = R(ops[1:])
        elif mn.startswith("buffer_store") or mn.startswith("global_store") or "atomic" in mn:
            self.kind = "vstore"; self.writes = set(); self.reads = R(ops)
        elif mn == "s_nop":
            self.kind = "nop"; self.writes = set(); self.reads = set(); self.states = int(ops[0]) + 1
        elif mn in ("s_waitcnt", "s_barrier", "s_endpgm", "s_setprio", "s_sleep") or mn.startswith("s_branch") or mn.startswith("s_cbranch") or mn.startswith("buffer_inv") or mn.startswith("buffer_wbl2"):
            self.kind = "ctl"; self.writes = set(); self.reads = set()
        elif mn.startswith("s_cmp") or mn.startswith("s_bitcmp"):
            self.kind = "salu"; self.writes = set(); self.reads = R(ops)
        elif mn.startswith("s_"):
            self.kind = "salu"; self.writes = R(ops[:1]); self.reads = R(ops[1:])
        else:
            raise ValueError("unknown instruction: " + text)

VALU_LIKE = ("valu", "trans", "perm", "readlane")
MEM = ("dsr", "dsw", "dma", "vload", "vstore")

def need_states(p, c):
    n = 0
    pw_v = {r for r in p.writes if r[0] in "va" and r != "vcc"}
    pw_s = p.writes - pw_v
    if p.kind in VALU_LIKE:
        if c.kind == "mfma" and pw_v & c.reads: n = max(n, 2)
        if c.kind == "perm" and pw_v & c.reads: n = max(n, 2)
        if c.kind == "readlane" and pw_v & c.reads: n = max(n, 1)
        if p.kind == "trans" and c.kind in VALU_LIKE and c.kind != "trans" and pw_v & c.reads: n = max(n, 1)
        if p.kind == "trans" and c.kind == "trans" and pw_v & c.reads: n = max(n, 1)
        if pw_s & c.reads:
            if c.kind in ("dma", "vload", "vstore"): n = max(n, 5)
            elif c.kind in VALU_LIKE or c.kind == "mfma": n = max(n, 4 if c.kind == "readlane" else 2)
            elif c.kind == "salu": n = max(n, 1)
    if p.kind == "salu" and "m0" in p.writes and c.kind == "dma": n = max(n, 1)
    if p.kind == "mfma":
        full = {4: 8, 8: 12}[p.passes]
        if c.kind == "mfma":
            ab = c.reads - c.srcc
            if p.writes & ab: n = max(n, full)
            if p.writes & c.srcc and not (p.writes == c.srcc and p.passes == c.passes): n = max(n, full - 2)
            if p.writes & c.writes and not (p.writes & c.srcc): n = max(n, full - 2) if p.writes != c.writes else n
        elif c.kind in VALU_LIKE or c.kind in MEM:
            if p.writes & (c.reads | c.writes): n = max(n, full)
            if c.kind in VALU_LIKE and p.srcc & c.writes: n = max(n, {4: 3, 8: 7}[p.passes])
    if p.kind == "vstore" and ("x4" in p.text or "x3" in p.text):
        if (c.kind in VALU_LIKE or c.kind in ("mfma", "dsr", "vload")) and p.reads & c.writes: n = max(n, 2)
    return n

class Emitter:
    def __init__(self):
        self.lines = []
        self.hist = []
        self.lds = []
        self.nops = 0
    def state(self):
        return (list(self.hist), [set(x) for x in self.lds])
    def set_state(self, st):
        self.hist = list(st[0]); self.lds = [set(x) for x in st[1]]
    def raw(self, text):
        self.lines.append(text)
    def label(self, name):
        self.lines.append(name + ":")
    def comment(self, text):
        self.lines.append("    ; " + text)
    def _push(self, ins):
        self.lines.append("    " + ins.text)
        self.hist.append(ins)
        if len(self.hist) > 24: self.hist.pop(0)
    def wait_lgkm(self, n):
        self._push(Ins(f"s_waitcnt lgkmcnt({n})"))
        self.lds = self.lds[len(self.lds) - n:] if n else []
    def __call__(self, text):
        for t in text.strip().split("\n"):
            t = t.strip()
            if t.endswith(":"): self.label(t[:-1])
            elif t: self._one(t)
    def _one(self, text):
        ins = Ins(text)
        m = re.search(r"lgkmcnt\((\d+)\)", text) if text.startswith("s_waitcnt") else None
        if m:
            n = int(m.group(1))
            if n < len(self.lds): self.lds = self.lds[len(self.lds) - n:] if n else []
        touched = ins.reads | ins.writes
        last = -1
        for i, d in enumerate(self.lds):
            if d & touched: last = i
        if last >= 0:
            self.wait_lgkm(len(self.lds) - 1 - last)
        if ins.kind in ("dsr", "dsw") and len(self.lds) >= 15:
            self.wait_lgkm(14)
        dist = 0; need = 0
        for p in reversed(self.hist):
            need = max(need, need_states(p, ins) - dist)
            dist += p.states
            if dist >= 20: break
        if need > 0:
            self._push(Ins(f"s_nop {need-1}")); self.nops += need
        self._push(ins)
        if ins.kind == "dsr": self.lds.append(set(ins.writes))
        elif ins.kind == "dsw": self.lds.append(set())
    def prewait(self, text):
        ins = Ins(text); touched = ins.reads | ins.writes
        last = -1
        for i, d in enumerate(self.lds):
            if d & touched: last = i
        if last >= 0: self.wait_lgkm(len(self.lds) - 1 - last)
    def loop(self, name, body, tail):
        st0 = self.state(); n0 = len(self.lines)
        body(); self(tail)
        t1 = self.lines[n0:]; del self.lines[n0:]
        body(); self(tail)
        t2 = self.lines[n0:]; del self.lines[n0:]
        if t1 != t2:
            import difflib
            print("\n".join(difflib.unified_diff(t1, t2, lineterm="", n=2)))
            raise RuntimeError("loop body differs between entry and steady state: " + name)
        self.label(name)
        self.lines.extend(t2)
    def text(self):
        return "\n".join(self.lines) + "\n"

def interleave(E, mfmas, fillers, nxt=None):
    for t in fillers.get(-1, []): E(t)
    for i, m in enumerate(mfmas):
        E(m)
        follow = mfmas[i+1] if i + 1 < len(mfmas) else nxt
        if follow: E.prewait(follow)
        for t in fillers.get(i, []): E(t)
```

```python
import math, struct, sys
from emit import *

NAME = "concat_heads__mha_block_cached__gqa_block_cached__near_ridge"
KN = NAME + "_kernel"
SLOT = 40960
TILE = 32768
OWNW = 4 * TILE
WS_O, WS_P, WS_F, WS_T = 0, 16 << 20, 32 << 20, 64 << 20
C_SCALE = struct.unpack("<I", struct.pack("<f", math.log2(math.e) / math.sqrt(128.0)))[0]
THRESH = 0x47800000

SRD_X, SRD_W, SRD_K, SRD_V, SRD_S, SRD_D = 32, 36, 40, 44, 48, 72
S_WAVE, S_BR, S_HG, S_J7, S_P = 52, 53, 54, 55, 56
S_T0, S_T1, S_LW, S_CNT, S_PH, S_KC, S_WB, S_XB, S_DELTA, S_KVB, S_NT = 57, 58, 59, 60, 61, 62, 63, 64, 65, 66, 67
S_C = 68
S_MASK, S_CLS = 70, 71
S_M0W, S_M0X, S_T3, S_SPIN = 76, 77, 78, 79
S_TS = 80

V_LANE = 1
V_A, V_B, V_K, V_NM = 4, 12, 12, 16
V_L = [2, 28, 30]
V_F, V_ACC, V_Q, V_S = 32, 64, 160, 208
TA, TB, TC = 244, 245, 246

def acc(t, qt): return V_ACC + (t * 3 + qt) * 4
def frag(n): return V_F + (n % 8) * 4
def sreg(kt, qt): return V_S + (kt * 3 + qt) * 4
def qreg(qt, j): return V_Q + (qt * 4 + j) * 4
def breg(st, qt): return V_S + (st * 3 + qt) * 4
MF = "v_mfma_f32_16x16x32_bf16"

class Cfg:
    kv_flag = " nt"; w_flag = ""; x_flag = ""; wo_flag = ""; out_st = ""
    rot = 8
    nburst = 5; bper = 2; bfirst = 3
    kvl = 8; kvs = 4
    early = 5
    cap = 0
    ownw_at = 29; cnt_at = 24
    fakekv = False
    local = True; loc_st = " nt"; wpre = True; flag_at = 44; wb = False
    stamps = False; encode = -1
    def __init__(self, **kw): self.__dict__.update(kw)

def srd(E, d, base, nbytes):
    E(f"s_mov_b32 {s(d)}, {s(base)}\ns_and_b32 {s(d+1)}, {s(base+1)}, 0xffff\ns_mov_b32 {s(d+2)}, {nbytes}\ns_mov_b32 {s(d+3)}, 0x20000")

def stamp(E, cfg, i):
    if cfg.stamps: E(f"s_memrealtime {s(S_TS+2*i,2)}")

def stamps_out(E, cfg, n):
    if not cfg.stamps: return
    E("s_waitcnt lgkmcnt(0)")
    if cfg.encode >= 0:
        E(f"s_sub_u32 {s(S_T0)}, {s(S_TS+2*cfg.encode)}, {s(S_TS)}\ns_lshl_b32 {s(S_T0)}, {s(S_T0)}, 2\ns_add_u32 {s(S_T0)}, {s(S_T0)}, 10000")
        E.label("L_enc")
        E(f"s_sleep 4\ns_memrealtime s[96:97]\ns_waitcnt lgkmcnt(0)\ns_sub_u32 s96, s96, {s(S_TS)}\ns_cmp_lt_u32 s96, {s(S_T0)}\ns_cbranch_scc1 L_enc")
        return
    E(f"s_lshl_b32 {s(S_T0)}, s2, 3\ns_add_u32 {s(S_T0)}, {s(S_T0)}, {s(S_WAVE)}\ns_lshl_b32 {s(S_T0)}, {s(S_T0)}, 7\ns_add_u32 {s(S_T0)}, {s(S_T0)}, {WS_T}")
    E(f"v_mov_b32 v2, 0")
    for i in range(n):
        E(f"v_mov_b32 v4, {s(S_TS+2*i)}\nv_mov_b32 v5, {s(S_TS+2*i+1)}")
        E(f"buffer_store_dwordx2 v[4:5], v2, {s(SRD_S,4)}, {s(S_T0)} offen offset:{8*i}")
        E("s_nop 1")

def put(fill, i, *items): fill.setdefault(i, []).extend(items)

def a_addr_init(E, base_s, xor_s=None):
    L = v(V_LANE)
    E(f"v_lshrrev_b32 {v(TA)}, 2, {L}\nv_and_b32 {v(TB)}, 7, {v(TA)}\nv_lshlrev_b32 {v(TB)}, 5, {v(TB)}\nv_lshl_add_u32 {v(TB)}, {v(TA)}, 8, {v(TB)}")
    E(f"v_and_b32 {v(TC)}, 3, {L}\nv_lshl_add_u32 {v(TB)}, {v(TC)}, 3, {v(TB)}")
    E(f"v_xor_b32 {v(V_A)}, {xor_s}, {v(TB)}" if xor_s else f"v_add_u32 {v(V_A)}, {base_s}, {v(TB)}")
    for t in range(1, 8): E(f"v_xor_b32 {v(V_A+t)}, {t<<5}, {v(V_A)}")

def rd_a(n):
    st, t = (n >> 3) & 1, n & 7
    return [f"ds_read_b64_tr_b16 {v(frag(n),2)}, {v(V_A+t)} offset:{st*8192}",
            f"ds_read_b64_tr_b16 {v(frag(n)+2,2)}, {v(V_A+t)} offset:{st*8192+4096}"]
def rd_b(st): return [f"ds_read_b128 {v(breg(st,qt),4)}, {v(V_B+st)} offset:{qt*2048}" for qt in range(3)]
def rd_k(n): return [f"ds_read_b128 {v(frag(n),4)}, {v(V_K+(n&3))} offset:{(n>>2)*4096}"]

def gemm(E):
    E("s_barrier")
    b0 = rd_b(0)
    for n in range(6):
        for t in rd_a(n): E(t)
        if n < 3: E(b0[n])
    E(f"s_mov_b32 {s(S_CNT)}, 0\ns_mov_b32 {s(S_T1)}, {SLOT}")
    mf = [f"{MF} {v(acc(n&7,qt),4)}, {v(frag(n),4)}, {v(breg(n>>3,qt),4)}, {v(acc(n&7,qt),4)}" for n in range(16) for qt in range(3)]
    def body():
        fill = {}
        put(fill, 2, f"s_add_u32 {s(S_CNT)}, {s(S_CNT)}, 1", f"s_and_b32 {s(S_T0)}, {s(S_CNT)}, 3")
        put(fill, 5, f"s_cselect_b32 {s(S_DELTA)}, {s(S_T1)}, {(-3*SLOT) & 0xffffffff}")
        put(fill, 29, "s_barrier")
        for n in range(16):
            a = rd_a(n + 6)
            put(fill, 3*n, a[0]); put(fill, 3*n+1, a[1])
        for k, t in enumerate(rd_b(1)): put(fill, 3*k+5, t)
        for k, t in enumerate(b0): put(fill, 3*k+32, t)
        add = lambda r: f"v_add_u32 {v(r)}, {s(S_DELTA)}, {v(r)}"
        for t in range(8): put(fill, 3*(t+3)+1, add(V_A+t))
        put(fill, 17, add(V_B)); put(fill, 20, add(V_B+1))
        interleave(E, mf, fill)
    E.loop("L_gemm", body, f"s_cmp_lt_u32 {s(S_CNT)}, {s(S_KC)}\ns_cbranch_scc1 L_gemm")
    E("s_waitcnt lgkmcnt(0)")

def zero_acc(E):
    for r in range(V_ACC, V_ACC + 96, 2): E(f"v_mov_b64 {v(r,2)}, 0")

def xlane(E, op, regs, tmp):
    for sw in ("v_permlane32_swap_b32", "v_permlane16_swap_b32"):
        for r, t in zip(regs, tmp): E(f"v_mov_b32 {v(t)}, {v(r)}")
        for r, t in zip(regs, tmp): E(f"{sw} {v(t)}, {v(r)}")
        for r, t in zip(regs, tmp): E(f"{op} {v(r)}, {v(r)}, {v(t)}")

SUM = [V_F, V_F + 2, V_F + 4]
def sum_ops(kts):
    out = []
    for kt in kts:
        for h in range(2):
            for qt in range(3):
                r = sreg(kt, qt)
                if kt == 0 and h == 0: continue
                if kt == 0: out.append(f"v_pk_add_f32 {v(SUM[qt],2)}, {v(r,2)}, {v(r+2,2)}")
                else: out.append(f"v_pk_add_f32 {v(SUM[qt],2)}, {v(SUM[qt],2)}, {v(r+2*h,2)}")
    return out
def cvt_ops(kts):
    return [f"v_cvt_pk_bf16_f32 {v(sreg(kt&2,qt)+2*(kt&1)+h)}, {v(sreg(kt,qt)+2*h)}, {v(sreg(kt,qt)+2*h+1)}" for kt in kts for h in range(2) for qt in range(3)]
def exp_ops(kt): return [f"v_exp_f32 {v(sreg(kt,qt)+i)}, {v(sreg(kt,qt)+i)}" for qt in range(3) for i in range(4)]
def qk_mfmas(cinit):
    return [f"{MF} {v(sreg(n>>2,qt),4)}, {v(frag(n),4)}, {v(qreg(qt,n&3),4)}, {v(sreg(n>>2,qt),4) if n&3 else cinit(qt)}" for n in range(16) for qt in range(3)]

def attention(E, cfg):
    L = v(V_LANE)
    E(f"s_cmp_lg_u32 {s(S_WAVE)}, 0\ns_cbranch_scc1 L_nocount")
    E(f"s_lshl_b32 {s(S_T1)}, {s(S_BR)}, 2\ns_add_u32 {s(S_T1)}, {s(S_T1)}, {s(S_P)}\ns_lshl_b32 {s(S_T1)}, {s(S_T1)}, 2")
    E(f"s_getreg_b32 {s(S_T0)}, hwreg(HW_REG_XCC_ID, 0, 3)\ns_lshl_b32 {s(S_T0)}, {s(S_T0)}, 2")
    E(f"v_mul_u32_u24 {v(TA+5)}, {s(S_T0)}, {L}\nv_lshlrev_b32 {v(TA+5)}, {v(TA+5)}, 1")
    E(f"s_add_u32 {s(S_T0)}, {s(S_T1)}, {s(S_HG)}\ns_lshl_b32 {s(S_T0)}, {s(S_T0)}, 2\ns_add_u32 {s(S_T0)}, {s(S_T0)}, 128\ns_sub_u32 {s(S_T0)}, {s(S_T0)}, {s(S_T1)}")
    E(f"v_mul_u32_u24 {v(TA+4)}, {s(S_T0)}, {L}\ns_mov_b64 exec, 3\ns_waitcnt vmcnt(0)")
    E(f"buffer_atomic_add {v(TA+5)}, {v(TA+4)}, {s(SRD_D,4)}, {s(S_T1)} offen sc1\ns_mov_b64 exec, -1")
    E.label("L_nocount")
    E("s_nop 7")
    E(f"s_mov_b32 {s(S_C)}, {C_SCALE}\ns_mov_b32 {s(S_C+1)}, {C_SCALE}")
    E(f"s_lshr_b32 {s(S_T0)}, {s(S_WAVE)}, 1\ns_lshl_b32 {s(S_T0)}, {s(S_T0)}, 14")
    E(f"v_lshrrev_b32 {v(TA)}, 4, {L}\nv_and_b32 {v(TB)}, 1, {v(TA)}\nv_lshrrev_b32 {v(TA)}, 1, {v(TA)}\nv_lshl_or_b32 {v(TA)}, {v(TB)}, 1, {v(TA)}")
    E(f"v_and_b32 {v(TB)}, 15, {L}\nv_xor_b32 {v(TA)}, {v(TA)}, {v(TB)}\nv_lshlrev_b32 {v(TA)}, 4, {v(TA)}\nv_lshl_add_u32 {v(TA)}, {v(TB)}, 8, {v(TA)}\nv_add_u32 {v(V_K)}, {s(S_T0)}, {v(TA)}")
    for j in range(1, 4): E(f"v_xor_b32 {v(V_K+j)}, {j<<6}, {v(V_K)}")
    E(f"s_add_u32 {s(S_T0)}, {s(S_T0)}, {TILE}")
    a_addr_init(E, s(S_T0))
    for qt in range(3):
        E(f"v_mov_b32 {v(V_NM+4*qt)}, 0x7f800000\nv_mov_b64 {v(V_L[qt],2)}, 0")
    for j in range(4):
        for qt in range(3):
            q = qreg(qt, j)
            for e in range(2):
                a = acc(2*j+e, qt)
                for h in range(2): E(f"v_pk_mul_f32 {v(a+2*h,2)}, {v(a+2*h,2)}, {s(S_C,2)}")
            for e in range(2):
                a = acc(2*j+e, qt)
                E(f"v_cvt_pk_bf16_f32 {v(q+2*e)}, {v(a)}, {v(a+1)}\nv_cvt_pk_bf16_f32 {v(q+2*e+1)}, {v(a+2)}, {v(a+3)}")
    for qt in range(3):
        for j in range(4):
            q = qreg(qt, j)
            E(f"v_permlane16_swap_b32 {v(q)}, {v(q+2)}\nv_permlane16_swap_b32 {v(q+1)}, {v(q+3)}")
    E(f"s_mov_b32 {s(S_CNT)}, 0\ns_mov_b32 {s(S_DELTA)}, {2*TILE}\ns_mov_b32 {s(S_T3)}, {THRESH}")
    prek = sum([rd_k(n) for n in range(6)], [])
    E.label("L_exact")
    E("s_nop 7")
    for t in prek: E(t)
    fill = {}
    for n in range(10): put(fill, 3*n, *rd_k(n + 6))
    interleave(E, qk_mfmas(lambda qt: "0"), fill)
    MN = [V_F + 8, V_F + 10, V_F + 12]; AL = [V_F + 14, V_F + 16, V_F + 18]; TM = [V_F + 9, V_F + 11, V_F + 13]
    for kt in range(4):
        for h in range(2):
            for qt in range(3):
                src = f"-{v(V_NM+4*qt)}" if (kt == 0 and h == 0) else v(MN[qt])
                E(f"v_max3_f32 {v(MN[qt])}, {src}, {v(sreg(kt,qt)+2*h)}, {v(sreg(kt,qt)+2*h+1)}")
    xlane(E, "v_max_f32", MN, TM)
    for qt in range(3): E(f"v_sub_f32_e64 {v(AL[qt])}, -{v(V_NM+4*qt)}, {v(MN[qt])}")
    for qt in range(3): E(f"v_exp_f32 {v(AL[qt])}, {v(AL[qt])}")
    for qt in range(3):
        for i in range(4): E(f"v_sub_f32 {v(V_NM+4*qt+i)}, 0, {v(MN[qt])}")
    for kt in range(4):
        for qt in range(3):
            for h in range(2): E(f"v_pk_add_f32 {v(sreg(kt,qt)+2*h,2)}, {v(sreg(kt,qt)+2*h,2)}, {v(V_NM+4*qt,2)}")
    for kt in range(4):
        for t in exp_ops(kt): E(t)
    for qt in range(3):
        E(f"v_pk_mul_f32 {v(V_L[qt],2)}, {v(V_L[qt],2)}, {v(AL[qt],2)} op_sel_hi:[1,0]")
        for t in range(8):
            for h in range(2):
                r = acc(t, qt) + 2*h
                E(f"v_pk_mul_f32 {v(r,2)}, {v(r,2)}, {v(AL[qt],2)} op_sel_hi:[1,0]")
    for t in sum_ops(range(4)) + cvt_ops([0, 1]): E(t)
    E("s_branch L_join")
    def body():
        fill = {}
        for n in range(10): put(fill, 3*n, *rd_k(n + 6))
        ex = exp_ops(0) + exp_ops(1) + exp_ops(2)
        for k, t in enumerate(ex): put(fill, min(14 + k, 47), t)
        interleave(E, qk_mfmas(lambda qt: v(V_NM+4*qt, 4)), fill)
        for t in sum_ops([0, 1]) + cvt_ops([0, 1]) + exp_ops(3) + sum_ops([2, 3]): E(t)
        E(f"v_max3_f32 {v(V_F+6)}, {v(SUM[0])}, {v(SUM[0]+1)}, {v(SUM[1])}\nv_max3_f32 {v(V_F+7)}, {v(SUM[1]+1)}, {v(SUM[2])}, {v(SUM[2]+1)}")
        E(f"v_max_f32 {v(V_F+6)}, {v(V_F+6)}, {v(V_F+7)}\nv_cmp_lt_f32 vcc, {s(S_T3)}, {v(V_F+6)}\ns_nop 4\ns_cbranch_vccnz L_exact")
        E.label("L_join")
        for qt in range(3): E(f"v_pk_add_f32 {v(V_L[qt],2)}, {v(V_L[qt],2)}, {v(SUM[qt],2)}")
        E("s_barrier")
        for n in range(6):
            for t in rd_a(n): E(t)
        for t in cvt_ops([2, 3]): E(t)
        mf = [f"{MF} {v(acc(n&7,qt),4)}, {v(frag(n),4)}, {v(sreg(2*(n>>3),qt),4)}, {v(acc(n&7,qt),4)}" for n in range(16) for qt in range(3)]
        fill = {}
        for n in range(10):
            a = rd_a(n + 6)
            put(fill, 3*n, a[0]); put(fill, 3*n+1, a[1])
        add = lambda r: f"v_xor_b32 {v(r)}, {s(S_DELTA)}, {v(r)}"
        for j in range(4): put(fill, 2 + 3*j, add(V_K+j))
        for t in range(8): put(fill, 3*(t+3)+1, add(V_A+t))
        put(fill, 26, f"s_add_u32 {s(S_CNT)}, {s(S_CNT)}, 1", f"s_cmp_lt_u32 {s(S_CNT)}, 8")
        put(fill, 29, "s_barrier")
        for k, t in enumerate(prek): put(fill, 30 + 3*k, t)
        interleave(E, mf, fill)
    E.lds = [set(Ins(t).writes) for t in prek]
    E.loop("L_attn", body, f"s_cbranch_scc1 L_attn")
    E("s_waitcnt lgkmcnt(0)")
    stamp(E, cfg, 2)
    E(f"s_lshl_b32 {s(S_T0)}, {s(S_HG)}, 6\ns_or_b32 {s(S_T0)}, {s(S_T0)}, {OWNW}")
    if cfg.local: E(f"v_mov_b32 {v(V_NM+6)}, {2*SLOT + 16}\nds_read_b32 {v(V_NM+7)}, {v(V_NM+6)}")
    a_addr_init(E, None, s(S_T0))
    def rd_w(n):
        return [f"ds_read_b64_tr_b16 {v(frag(n)+2*e,2)}, {v(V_A+(n&7))} offset:{(n>>3)*8192 + e*4096}" for e in range(2)]
    for n in range(6):
        for t in rd_w(n): E(t)
    LS = [V_NM, V_NM + 2, V_NM + 4]
    for qt in range(3): E(f"v_add_f32 {v(LS[qt])}, {v(V_L[qt])}, {v(V_L[qt]+1)}")
    xlane(E, "v_add_f32", LS, [V_NM + 1, V_NM + 3, V_NM + 5])
    for qt in range(3): E(f"v_rcp_f32 {v(LS[qt])}, {v(LS[qt])}")
    E(f"s_lshl_b32 {s(S_T0)}, {s(S_BR)}, 2\ns_add_u32 {s(S_T0)}, {s(S_T0)}, {s(S_P)}\ns_lshl_b32 {s(S_T0)}, {s(S_T0)}, 2\ns_add_u32 {s(S_T0)}, {s(S_T0)}, {s(S_WAVE)}")
    E(f"s_lshl_b32 {s(S_T0)}, {s(S_T0)}, 2\ns_add_u32 {s(S_T0)}, {s(S_T0)}, {s(S_HG)}\ns_lshl_b32 {s(S_T0)}, {s(S_T0)}, 3\ns_add_u32 {s(S_T0)}, {s(S_T0)}, {s(S_J7)}")
    E(f"s_mul_i32 {s(S_T0)}, {s(S_T0)}, 12288\ns_add_u32 {s(S_T0)}, {s(S_T0)}, {WS_O}")
    E(f"v_lshlrev_b32 v2, 4, {L}")
    oreg = lambda j, qt: V_Q + (((j>>1)*3+qt)*2 + (j&1))*4
    def convert(flag):
        for jp in range(2):
            for qt in range(3):
                for jj in range(2):
                    j = 2*jp + jj; d = oreg(j, qt)
                    for e in range(2):
                        a = acc(2*j+e, qt)
                        for h in range(2): E(f"v_pk_mul_f32 {v(a+2*h,2)}, {v(a+2*h,2)}, {v(LS[qt],2)} op_sel_hi:[1,0]")
                    for e in range(2):
                        a = acc(2*j+e, qt)
                        E(f"v_cvt_pk_bf16_f32 {v(d+2*e)}, {v(a)}, {v(a+1)}\nv_cvt_pk_bf16_f32 {v(d+2*e+1)}, {v(a+2)}, {v(a+3)}")
                    off = jp*6144 + qt*2048 + jj*1024
                    if off and off % 4096 == 0: E(f"s_add_u32 {s(S_T0)}, {s(S_T0)}, 4096")
                    E(f"buffer_store_dwordx4 {v(d,4)}, v2, {s(SRD_S,4)}, {s(S_T0)} offen offset:{off%4096}{flag}")
    if cfg.local:
        E(f"v_readfirstlane_b32 {s(S_MASK)}, {v(V_NM+7)}\ns_getreg_b32 {s(S_T1)}, hwreg(HW_REG_XCC_ID, 0, 3)\ns_lshl_b32 {s(S_T1)}, {s(S_T1)}, 2\ns_lshl_b32 {s(S_T1)}, 8, {s(S_T1)}")
        E(f"s_cmp_eq_u32 {s(S_MASK)}, {s(S_T1)}\ns_cselect_b32 {s(S_MASK)}, 1, 0\ns_cbranch_scc1 L_cv_local")
        st0 = E.state()
        convert(" sc1")
        E("s_branch L_cv_done")
        E.label("L_cv_local"); E.set_state(st0)
        convert(cfg.loc_st)
        E.label("L_cv_done")
    else:
        convert(" sc1")
    stamp(E, cfg, 3)
    mf = [f"{MF} {v(acc(n&7,qt),4)}, {v(frag(n),4)}, {v(oreg(n>>3,qt),4)}, {v(acc(n&7,qt),4) if n >= 8 else 0}" for n in range(32) for qt in range(3)]
    fill = {}
    for n in range(26):
        a = rd_w(n + 6)
        put(fill, 3*n, a[0]); put(fill, 3*n+1, a[1])
    put(fill, 2, f"s_mul_i32 {s(S_T0)}, {s(S_WAVE)}, 6144", f"s_add_u32 {s(S_T0)}, {s(S_T0)}, 16384")
    put(fill, 5, f"v_lshl_add_u32 {v(V_B)}, {L}, 4, {s(S_T0)}")
    put(fill, 8, f"v_add_u32 {v(V_B+1)}, 1024, {v(V_B)}")
    put(fill, 11, f"s_lshl_b32 {s(S_T0)}, s2, 3", f"s_add_u32 {s(S_T0)}, {s(S_T0)}, {s(S_WAVE)}")
    put(fill, 14, f"s_lshl_b32 {s(S_T0)}, {s(S_T0)}, 7", f"s_add_u32 {s(S_T0)}, {s(S_T0)}, {WS_F}")
    put(fill, 17, f"v_mov_b32 v2, 0", f"v_mov_b32 v3, 1")
    put(fill, 20, f"s_mov_b32 {s(S_PH)}, 1", f"s_mov_b32 {s(S_KC)}, 14")
    for t in range(8): put(fill, 80 + t, f"v_xor_b32 {v(V_A+t)}, {OWNW}, {v(V_A+t)}")
    def flag_store(flag):
        return ["s_mov_b64 exec, 1", "s_waitcnt vmcnt(0)", f"buffer_store_dword v3, v2, {s(SRD_S,4)}, {s(S_T0)} offen{flag}", "s_mov_b64 exec, -1"]
    if cfg.local:
        put(fill, cfg.flag_at, f"s_cmp_eq_u32 {s(S_MASK)}, 0", "s_cbranch_scc1 5", *flag_store(""))
        put(fill, 95, f"s_cmp_lg_u32 {s(S_MASK)}, 0", "s_cbranch_scc1 5", *flag_store(" sc1"))
    else:
        put(fill, 95, *flag_store(" sc1"))
    interleave(E, mf, fill)
    E("s_branch L_gemm_entry")

def final(E, cfg):
    L = v(V_LANE)
    stamp(E, cfg, 4)
    E(f"s_lshl_b32 {s(S_T0)}, {s(S_BR)}, 2\ns_add_u32 {s(S_T0)}, {s(S_T0)}, {s(S_P)}\ns_lshl_b32 {s(S_T0)}, {s(S_T0)}, 3\ns_add_u32 {s(S_T0)}, {s(S_T0)}, {s(S_NT)}")
    E(f"s_mul_i32 {s(S_T0)}, {s(S_T0)}, {4*3*12288}\ns_mul_i32 {s(S_T1)}, {s(S_WAVE)}, 3072\ns_add_u32 {s(S_T0)}, {s(S_T0)}, {s(S_T1)}\ns_add_u32 {s(S_XB)}, {s(S_T0)}, {WS_P}")
    E(f"v_lshlrev_b32 v2, 4, {L}")
    for k in range(1, 4):
        E(f"s_xor_b32 {s(S_T0)}, {s(S_HG)}, {k}\ns_mul_i32 {s(S_T0)}, {s(S_T0)}, {3*12288}\ns_add_u32 {s(S_T0)}, {s(S_T0)}, {(k-1)*12288}\ns_add_u32 {s(S_T0)}, {s(S_T0)}, {s(S_XB)}")
        for qt in range(3):
            d = V_Q + ((k-1)*3+qt)*4
            for e in range(2):
                a = acc(2*k+e, qt)
                E(f"v_cvt_pk_bf16_f32 {v(d+2*e)}, {v(a)}, {v(a+1)}\nv_cvt_pk_bf16_f32 {v(d+2*e+1)}, {v(a+2)}, {v(a+3)}")
            E(f"buffer_store_dwordx4 {v(d,4)}, v2, {s(SRD_S,4)}, {s(S_T0)} offen offset:{qt*1024} sc1")
    E(f"v_and_b32 v3, 3, {L}\nv_xor_b32 v3, s2, v3\nv_lshlrev_b32 v3, 10, v3")
    E(f"s_lshl_b32 {s(S_T1)}, {s(S_WAVE)}, 7\ns_add_u32 {s(S_T1)}, {s(S_T1)}, {WS_F + 512}")
    E(f"s_mul_i32 {s(S_T0)}, {s(S_HG)}, {3*12288}\ns_add_u32 {s(S_XB)}, {s(S_XB)}, {s(S_T0)}")
    E(f"v_mov_b32 v4, 1")
    srd(E, SRD_X, 24, 768*4096)
    E(f"s_lshl_b32 {s(S_T0)}, {s(S_P)}, 2\ns_add_u32 {s(S_T0)}, {s(S_T0)}, {s(S_WAVE)}\ns_mul_i32 {s(S_WB)}, {s(S_T0)}, {48*4096}")
    E(f"s_lshl_b32 {s(S_T0)}, {s(S_BR)}, 3\ns_add_u32 {s(S_T0)}, {s(S_T0)}, {s(S_NT)}\ns_lshl_b32 {s(S_T0)}, {s(S_T0)}, 2\ns_add_u32 {s(S_T0)}, {s(S_T0)}, {s(S_HG)}\ns_lshl_b32 {s(S_T0)}, {s(S_T0)}, 6\ns_add_u32 {s(S_WB)}, {s(S_WB)}, {s(S_T0)}")
    E(f"v_lshrrev_b32 v6, 4, {L}\nv_and_b32 v7, 1, v6\nv_lshrrev_b32 v6, 1, v6\nv_lshl_or_b32 v6, v7, 1, v6\nv_lshlrev_b32 v6, 4, v6\nv_and_b32 v7, 15, {L}\nv_lshl_add_u32 v6, v7, 12, v6")
    E("s_mov_b64 exec, 1\ns_waitcnt vmcnt(0)")
    E(f"buffer_store_dword v4, v3, {s(SRD_S,4)}, {s(S_T1)} offen sc1")
    stamp(E, cfg, 5)
    E("s_mov_b64 exec, 14")
    E.label("L_poll2")
    E(f"buffer_load_dword v5, v3, {s(SRD_S,4)}, {s(S_T1)} offen sc1\ns_waitcnt vmcnt(0)\nv_cmp_eq_u32 vcc, 0, v5\ns_nop 4\ns_cbranch_vccz L_poll2_done\ns_sleep 1\ns_sub_u32 {s(S_SPIN)}, {s(S_SPIN)}, 1\ns_cbranch_scc0 L_poll2")
    E.label("L_poll2_done")
    E("s_mov_b64 exec, -1")
    stamp(E, cfg, 6)
    for k in range(3):
        for qt in range(3):
            E(f"buffer_load_dwordx4 {v(V_S+(k*3+qt)*4,4)}, v2, {s(SRD_S,4)}, {s(S_XB)} offen offset:{qt*1024} sc1")
        if k < 2: E(f"s_add_u32 {s(S_XB)}, {s(S_XB)}, 12288")
    E(f"s_mov_b32 {s(S_T0)}, 0xffff0000")
    for k in range(3):
        for qt in range(3):
            E(f"s_waitcnt vmcnt({8-3*k-qt})")
            for i in range(4):
                w = V_S + (k*3+qt)*4 + i; t = V_F + 2*i
                E(f"v_lshlrev_b32 {v(t)}, 16, {v(w)}\nv_and_b32 {v(t+1)}, {s(S_T0)}, {v(w)}")
            for i in range(4):
                a = acc(i >> 1, qt) + 2*(i & 1)
                E(f"v_pk_add_f32 {v(a,2)}, {v(a,2)}, {v(V_F+2*i,2)}")
    for qt in range(3):
        d = V_F + 8 + 4*qt
        for e in range(2):
            a = acc(e, qt)
            E(f"v_cvt_pk_bf16_f32 {v(d+2*e)}, {v(a)}, {v(a+1)}\nv_cvt_pk_bf16_f32 {v(d+2*e+1)}, {v(a+2)}, {v(a+3)}")
    for qt in range(3):
        d = V_F + 8 + 4*qt
        E(f"v_permlane16_swap_b32 {v(d)}, {v(d+2)}\nv_permlane16_swap_b32 {v(d+1)}, {v(d+3)}")
    for qt in range(3):
        E(f"buffer_store_dwordx4 {v(V_F+8+4*qt,4)}, v6, {s(SRD_X,4)}, {s(S_WB)} offen{cfg.out_st}")
        if qt < 2: E(f"s_add_u32 {s(S_WB)}, {s(S_WB)}, {16*4096}")
    if cfg.stamps:
        E("s_waitcnt vmcnt(0)"); stamp(E, cfg, 7); stamps_out(E, cfg, 8)
    E("s_endpgm")

LW, LX, LK, LV, LL, LF, L0, L1, L2 = 4, 8, 14, 18, 20, 21, 22, 23, 24
NGRP = 7
def tile_reg(n, j): return 32 + (n % NGRP) * 32 + 4 * j

class Vm:
    def __init__(self, E): self.E = E; self.n = 0; self.mark = {}
    def op(self, text, tag=None):
        self.E(text); self.n += 1
        if tag is not None: self.mark[tag] = self.n
    def wait(self, tag, slack=0):
        self.E(f"s_waitcnt vmcnt({max(0, min(63, self.n - self.mark[tag] - slack))})")

def w_offsets(E, ldw, qproj):
    L = v(V_LANE)
    E(f"v_lshrrev_b32 {v(L0)}, 4, {L}\nv_and_b32 {v(L1)}, 15, {L}")
    if qproj:
        E(f"s_lshr_b32 {s(S_T0)}, {s(S_LW)}, 1\ns_lshl_b32 {s(S_T0)}, {s(S_T0)}, 5\ns_and_b32 {s(S_T1)}, {s(S_LW)}, 1\ns_lshl_b32 {s(S_T1)}, {s(S_T1)}, 2\ns_add_u32 {s(S_T0)}, {s(S_T0)}, {s(S_T1)}")
    else:
        E(f"s_lshl_b32 {s(S_T0)}, {s(S_LW)}, 4")
    step, sh = (8 if qproj else 4), int(math.log2(ldw))
    for j in range(2):
        E(f"v_or_b32 {v(L2)}, {j<<2}, {v(L0)}\nv_lshlrev_b32 {v(L2)}, 1, {v(L2)}\nv_xor_b32 {v(L2)}, {v(L2)}, {v(L1)}\nv_lshlrev_b32 {v(L2)}, 4, {v(L2)}")
        E(f"v_add_u32 {v(LW+j)}, {s(S_T0)}, {v(L0)}\nv_lshl_add_u32 {v(LW+j)}, {v(LW+j)}, {sh}, {v(L2)}")
    E(f"v_add_u32 {v(LW+1)}, {step*ldw - 1024}, {v(LW+1)}")
    for j in range(2): E(f"v_add_u32 {v(LW+2+j)}, {2*(step*ldw - 1024)}, {v(LW+j)}")

def issue_w(E, vm, st, ldw, flag, kc, lds=None):
    E(f"s_mul_i32 {s(S_T0)}, {s(kc)}, {64*ldw}\ns_add_u32 m0, {s(S_M0W)}, {(st%4)*SLOT if lds is None else lds}\ns_add_u32 {s(S_T0)}, {s(S_T0)}, {s(S_WB)}")
    for j in range(4): vm.op(f"buffer_load_dwordx4 {v(LW+j)}, {s(SRD_W,4)}, {s(S_T0)} offen offset:{1024*j}{flag} lds", ("W", st))
def issue_x(E, vm, st, xstep, srdx, flag, kc):
    E(f"s_mul_i32 {s(S_T1)}, {s(kc)}, {xstep}\ns_add_u32 m0, {s(S_M0X)}, {(st%4)*SLOT}\ns_add_u32 {s(S_T1)}, {s(S_T1)}, {s(S_XB)}")
    for j in range(6):
        if j == 4: E(f"s_add_u32 m0, {s(S_M0X)}, {(st%4)*SLOT + 4096}")
        vm.op(f"buffer_load_dwordx4 {v(LX+j)}, {s(srdx,4)}, {s(S_T1)} offen offset:{1024*(j&3)}{flag} lds", ("X", st))
def adv(E, kc): E(f"s_add_u32 {s(kc)}, {s(kc)}, 1\ns_and_b32 {s(kc)}, {s(kc)}, 15")

def kv_load(E, vm, cfg, n, j, first, count=True):
    if first or j == 0 or j == 4: E(f"s_add_u32 {s(S_T0)}, {s(S_KVB)}, {(n>>1)*16384 + (j>>2)*4096}")
    isv = n & 1
    r = LV + (j & 1) if isv else LK + (j & 3)
    t = f"buffer_load_dwordx4 {v(tile_reg(n,j),4)}, {v(r)}, {s(SRD_V if isv else SRD_K,4)}, {s(S_T0)} offen offset:{1024*(j&3)}{cfg.kv_flag}"
    if count: vm.op(t, ("T", n))
    else: E(t)

def output_phase(E, vm, cfg):
    L = v(V_LANE)
    S_TODO = S_KVB
    VX, VW, VOX, VOW, VZ = 32, 33, 34, 35, 36
    E(f"v_and_b32 {v(L2)}, 3, {L}\nv_mul_u32_u24 {v(VX)}, 6144, {v(L2)}\nv_add_u32 {v(VX)}, 16384, {v(VX)}\nv_lshlrev_b32 {v(VW)}, 12, {v(L2)}\nv_add_u32 {v(VW)}, {2*SLOT}, {v(VW)}")
    E(f"v_mov_b32 {v(VOX)}, {s(S_M0X)}\nv_mov_b32 {v(VOW)}, {s(S_M0W)}\nv_add_u32 {v(VOW)}, {2*SLOT}, {v(VOW)}\nv_mov_b32 {v(VZ)}, 0")
    E(f"ds_write_b32 {v(VOX)}, {v(VZ)}\nds_write_b32 {v(VOW)}, {v(VZ)}")
    E(f"s_mov_b64 exec, 2\nds_write_b32 {v(VOW)}, {v(LF+4)} offset:16\ns_mov_b64 exec, -1")
    E(f"s_lshl_b32 {s(S_T0)}, 1, {s(S_J7)}\ns_andn2_b32 {s(S_TODO)}, 0xff, {s(S_T0)}\ns_mov_b32 {s(S_MASK)}, 0\ns_add_u32 {s(S_CNT)}, {s(S_J7)}, 1")
    E(f"v_add_u32 {v(VX+5)}, {2*SLOT}, {v(VX)}\nv_add_u32 {v(VOX+4)}, {2*SLOT}, {v(VOX)}")
    if cfg.wpre:
        for k in range(2):
            E(f"s_mul_i32 {s(S_T0)}, {s(S_KC)}, {64*2048}\ns_add_u32 {s(S_T0)}, {s(S_T0)}, {s(S_WB)}")
            for j in range(4): vm.op(f"buffer_load_dwordx4 {v(96+16*k+4*j,4)}, {v(LW+j)}, {s(SRD_W,4)}, {s(S_T0)} offen offset:{1024*j}{cfg.wo_flag}")
            adv(E, S_KC)
    vm.wait(("W", 33))
    E("s_waitcnt lgkmcnt(0)\ns_barrier")
    def words(st):
        if st == 36: return VW, VOW
        return (VX, VOX) if (st - 34) % 4 == 0 else (VX + 5, VOX + 4)
    def decide(st):
        allw, own = words(st)
        E(f"s_cmp_lg_u32 {s(S_LW)}, 0\ns_cbranch_scc1 L_f{st}")
        E.label(f"L_p{st}")
        E(f"s_and_b32 {s(S_T0)}, {s(S_MASK)}, {s(S_TODO)}\ns_cbranch_scc1 L_pd{st}")
        E(f"s_mov_b32 exec_hi, 0\nbuffer_load_dword {v(L2)}, {v(LF)}, {s(SRD_S,4)}, {s(S_T3)} offen sc1\ns_waitcnt vmcnt(0)\nv_cmp_ne_u32 vcc, 0, {v(L2)}\ns_mov_b64 exec, -1\ns_nop 2")
        E(f"s_lshr_b32 {s(S_T0)}, vcc_lo, 16\ns_and_b32 {s(S_T0)}, {s(S_T0)}, vcc_lo\ns_lshr_b32 {s(S_MASK)}, {s(S_T0)}, 8\ns_and_b32 {s(S_MASK)}, {s(S_MASK)}, {s(S_T0)}")
        E(f"s_sub_u32 {s(S_SPIN)}, {s(S_SPIN)}, 1\ns_cbranch_scc0 L_p{st}\ns_mov_b32 {s(S_SPIN)}, 0\ns_mov_b32 {s(S_T0)}, {s(S_TODO)}")
        E.label(f"L_pd{st}")
        E(f"s_lshl_b32 {s(S_T1)}, {s(S_T0)}, 8\ns_or_b32 {s(S_T0)}, {s(S_T0)}, {s(S_T1)}\ns_lshr_b32 {s(S_T0)}, {s(S_T0)}, {s(S_CNT)}\ns_ff1_i32_b32 {s(S_T0)}, {s(S_T0)}")
        E(f"s_add_u32 {s(S_T0)}, {s(S_T0)}, {s(S_CNT)}\ns_and_b32 {s(S_T0)}, {s(S_T0)}, 7\ns_bitset0_b32 {s(S_TODO)}, {s(S_T0)}\ns_add_u32 {s(S_T0)}, {s(S_T0)}, 1")
        E(f"v_mov_b32 {v(L2)}, {s(S_T0)}\ns_mov_b64 exec, 14\nds_write_b32 {v(allw)}, {v(L2)}\ns_mov_b64 exec, -1\ns_branch L_d{st}")
        E.label(f"L_f{st}")
        E(f"ds_read_b32 {v(L2)}, {v(own)}\ns_waitcnt lgkmcnt(0)\nv_readfirstlane_b32 {s(S_T0)}, {v(L2)}\ns_cmp_eq_u32 {s(S_T0)}, 0\ns_cbranch_scc1 L_f{st}")
        E.label(f"L_d{st}")
        E(f"s_sub_u32 {s(S_KC)}, {s(S_T0)}, 1\ns_lshl_b32 {s(S_KC)}, {s(S_KC)}, 1")
    def stage(st):
        issue_x(E, vm, st - 34, 6144, SRD_S, " sc1", S_KC); issue_w(E, vm, st - 34, 2048, cfg.wo_flag, S_KC)
        E(f"s_add_u32 {s(S_KC)}, {s(S_KC)}, 1")
    for st in range(34, 48, 2):
        decide(st)
        if st == 34: E.comment("MARK")
        stage(st)
        if st > 34:
            vm.wait(("W", st - 35)); E("s_barrier")
            if st + 2 < 48: E(f"ds_write_b32 {v(words(st+2)[1])}, {v(VZ)}")
        stage(st + 1)
        vm.wait(("W", st - 34)); E("s_waitcnt lgkmcnt(0)\ns_barrier")
    E("s_waitcnt vmcnt(0)\ns_barrier")
    if cfg.wb: E(f"s_cmp_lg_u32 {s(S_LW)}, 0\ns_cbranch_scc1 2\nbuffer_wbl2 sc1")
    E("s_barrier")

def loader(E, cfg):
    L = v(V_LANE)
    vm = Vm(E)
    E.label("L_k_loader")
    srd(E, SRD_X, 4, 768*2048); srd(E, SRD_W, 10, 1024*8192)
    E(f"s_sub_u32 {s(S_LW)}, {s(S_WAVE)}, 4")
    w_offsets(E, 8192, True)
    if cfg.rot == 8: E(f"s_lshl_b32 {s(S_KC)}, {s(S_P)}, 1\ns_add_u32 {s(S_KC)}, {s(S_KC)}, {s(S_J7)}\ns_lshl_b32 {s(S_KC)}, {s(S_KC)}, 1\ns_and_b32 {s(S_KC)}, {s(S_KC)}, 15")
    else: E(f"s_add_u32 {s(S_KC)}, {s(S_P)}, {s(S_J7)}\ns_mul_i32 {s(S_KC)}, {s(S_KC)}, {16//cfg.rot}\ns_and_b32 {s(S_KC)}, {s(S_KC)}, 15")
    E(f"s_lshl_b32 {s(S_KVB)}, {s(S_HG)}, 3\ns_add_u32 {s(S_KVB)}, {s(S_KVB)}, {s(S_J7)}\ns_lshl_b32 {s(S_WB)}, {s(S_KVB)}, 8")
    E(f"s_lshl_b32 {s(S_M0W)}, {s(S_LW)}, 12\ns_mul_i32 {s(S_M0X)}, {s(S_LW)}, 6144\ns_add_u32 {s(S_M0X)}, {s(S_M0X)}, 16384")
    issue_w(E, vm, 0, 8192, cfg.w_flag, S_KC)
    E(f"s_mul_i32 {s(S_XB)}, {s(S_P)}, {192*2048}\ns_mul_i32 {s(S_T0)}, {s(S_LW)}, 48")
    for j in range(2):
        E(f"v_add_u32 {v(L2)}, {4*j}, {v(L0)}\nv_xor_b32 {v(L2)}, {v(L2)}, {L}\nv_and_b32 {v(L2)}, 7, {v(L2)}\nv_lshlrev_b32 {v(L2)}, 4, {v(L2)}")
        E(f"v_lshrrev_b32 {v(LX+j)}, 3, {L}\nv_add_u32 {v(LX+j)}, {s(S_T0)}, {v(LX+j)}\nv_lshl_add_u32 {v(LX+j)}, {v(LX+j)}, 11, {v(L2)}")
    for j in range(5, 0, -1): E(f"v_add_u32 {v(LX+j)}, {8*j*2048 - 1024*(j&3)}, {v(LX+(j&1))}")
    issue_x(E, vm, 0, 128, SRD_X, cfg.x_flag, S_KC); adv(E, S_KC)
    def qstage(st):
        issue_w(E, vm, st, 8192, cfg.w_flag, S_KC); issue_x(E, vm, st, 128, SRD_X, cfg.x_flag, S_KC); adv(E, S_KC)
    srd(E, SRD_K, 6, 1 << 25); srd(E, SRD_V, 8, 1 << 25)
    E(f"s_lshl_b32 {s(S_T0)}, {s(S_P)}, 1\ns_lshr_b32 {s(S_T1)}, {s(S_LW)}, 1\ns_add_u32 {s(S_T0)}, {s(S_T0)}, {s(S_T1)}\ns_lshl_b32 {s(S_T0)}, {s(S_T0)}, 5\ns_add_u32 {s(S_KVB)}, {s(S_KVB)}, {s(S_T0)}")
    if cfg.fakekv: E(f"s_mov_b32 {s(S_KVB)}, 0")
    E(f"s_lshl_b32 {s(S_KVB)}, {s(S_KVB)}, 17\ns_and_b32 {s(S_T0)}, {s(S_LW)}, 1\ns_lshl_b32 {s(S_T0)}, {s(S_T0)}, 13\ns_add_u32 {s(S_KVB)}, {s(S_KVB)}, {s(S_T0)}")
    for j in range(4):
        E(f"v_or_b32 {v(L2)}, {4*j}, {v(L0)}\nv_xor_b32 {v(L2)}, {v(L2)}, {v(L1)}\nv_lshlrev_b32 {v(L2)}, 4, {v(L2)}\nv_lshl_add_u32 {v(LK+j)}, {v(L0)}, 8, {v(L2)}")
    for j in range(2):
        E(f"v_or_b32 {v(L2)}, {4*j}, {v(L0)}\nv_lshlrev_b32 {v(L2)}, 1, {v(L2)}\nv_xor_b32 {v(L2)}, {v(L2)}, {v(L1)}\nv_lshlrev_b32 {v(L2)}, 4, {v(L2)}\nv_lshl_add_u32 {v(LV+j)}, {v(L0)}, 8, {v(L2)}")
    E(f"s_lshl_b32 {s(S_T0)}, {s(S_LW)}, 13\nv_lshl_add_u32 {v(LL)}, {L}, 4, {s(S_T0)}\nv_add_u32 {v(LL+6)}, {2*TILE}, {v(LL)}")
    E(f"s_lshr_b32 {s(S_CLS)}, s2, 3\ns_mul_i32 {s(S_T0)}, {s(S_CLS)}, {-(-65536//cfg.bper)}\ns_lshr_b32 {s(S_T0)}, {s(S_T0)}, 16\ns_mul_i32 {s(S_T0)}, {s(S_T0)}, {cfg.bper}\ns_sub_u32 {s(S_CLS)}, {s(S_CLS)}, {s(S_T0)}")
    qstage(1)
    assert cfg.bfirst + cfg.nburst * cfg.bper <= 14 and cfg.nburst <= NGRP
    for i in range(14):
        vm.wait(("X", i)); E("s_barrier")
        qstage(i + 2)
        k, c = divmod(i - cfg.bfirst, cfg.bper)
        if i >= cfg.bfirst and k < cfg.nburst:
            E(f"s_cmp_lg_u32 {s(S_CLS)}, {c}\ns_cbranch_scc1 L_nb{i}")
            for j in range(8): kv_load(E, vm, cfg, k, j, False, count=False)
            E.label(f"L_nb{i}")
            vm.mark[("T", k)] = vm.n
    todo = [(n, j) for n in range(cfg.nburst, 16) for j in range(8)]
    st8 = dict(written=-1)
    def take(cnt):
        first = True
        while cnt and todo and todo[0][0] - NGRP <= st8["written"]:
            n, j = todo.pop(0)
            if cfg.cap: E(f"s_waitcnt vmcnt({cfg.cap-1})")
            kv_load(E, vm, cfg, n, j, first); first = False; cnt -= 1
    def write(n):
        take(sum(1 for t, _ in todo if t <= n))
        vm.wait(("T", n))
        sl = n % 4
        for j in range(8): E(f"ds_write_b128 {v(LL if sl < 2 else LL+6)}, {v(tile_reg(n,j),4)} offset:{(sl&1)*TILE + 1024*j}")
    for i in range(14, 32):
        if i < 16: vm.wait(("X", i))
        E("s_barrier")
        if i == 31: break
        if i == cfg.cnt_at:
            E(f"s_lshl_b32 {s(S_T0)}, {s(S_BR)}, 2\ns_add_u32 {s(S_T0)}, {s(S_T0)}, {s(S_P)}\ns_lshl_b32 {s(S_CLS)}, {s(S_T0)}, 2")
            E(f"s_add_u32 {s(S_T0)}, {s(S_CLS)}, {s(S_HG)}\ns_lshl_b32 {s(S_T0)}, {s(S_T0)}, 2\ns_add_u32 {s(S_T0)}, {s(S_T0)}, 128\ns_sub_u32 {s(S_T0)}, {s(S_T0)}, {s(S_CLS)}")
            E(f"v_and_b32 {v(LF+6)}, 1, {L}\nv_mul_u32_u24 {v(LF+6)}, {s(S_T0)}, {v(LF+6)}")
            vm.op(f"buffer_load_dword {v(LF+4)}, {v(LF+6)}, {s(SRD_D,4)}, {s(S_CLS)} offen sc1", "cnt")
        if i == cfg.ownw_at:
            issue_w(E, vm, 32, 2048, cfg.wo_flag, S_KC, OWNW); adv(E, S_KC)
        n = i + 1 - 16
        ws = [t for t in (n, n + 1) if st8["written"] < t < 16 and (t == n or (t % 2 == 0 and 1 <= t // 2 <= cfg.early))]
        late = [t for t in ws if vm.mark.get(("T", t), 1 << 30) > vm.n - 8 or any(q == t for q, _ in todo)]
        for t in ws:
            if t not in late: write(t)
        if ws and ws[0] not in late:
            E("s_waitcnt lgkmcnt(0)"); st8["written"] = max(t for t in ws if t not in late)
        take(cfg.kvl if i % 2 == 0 else cfg.kvs)
        if i in (cfg.ownw_at, cfg.ownw_at + 1):
            k = i - cfg.ownw_at
            if k == 1:
                issue_w(E, vm, 32 + k, 2048, cfg.wo_flag, S_KC, OWNW + k*16384); adv(E, S_KC)
        if i == cfg.cnt_at + 2:
            vm.wait("cnt")
            E.label("L_cnt")
            E(f"v_readfirstlane_b32 {s(S_T0)}, {v(LF+4)}\ns_cmp_ge_u32 {s(S_T0)}, 32\ns_cbranch_scc1 L_cnt_done")
            E(f"s_sleep 2\nbuffer_load_dword {v(LF+4)}, {v(LF+6)}, {s(SRD_D,4)}, {s(S_CLS)} offen sc1\ns_waitcnt vmcnt(0)\ns_sub_u32 {s(S_SPIN)}, {s(S_SPIN)}, 1\ns_cbranch_scc0 L_cnt\ns_mov_b32 {s(S_SPIN)}, 0")
            E.label("L_cnt_done")
        if i == 16:
            srd(E, SRD_W, 12, 4096*2048)
            w_offsets(E, 2048, False)
            for j in range(6):
                E(f"v_lshlrev_b32 {v(LX+j)}, 4, {L}")
                if j >= 4: E(f"v_add_u32 {v(LX+j)}, 4096, {v(LX+j)}")
            E(f"s_lshl_b32 {s(S_WB)}, {s(S_HG)}, 21\ns_lshl_b32 {s(S_T0)}, {s(S_NT)}, 8\ns_add_u32 {s(S_WB)}, {s(S_WB)}, {s(S_T0)}")
            E(f"s_lshl_b32 {s(S_T0)}, {s(S_BR)}, 2\ns_add_u32 {s(S_T0)}, {s(S_T0)}, {s(S_P)}\ns_lshl_b32 {s(S_T0)}, {s(S_T0)}, 2\ns_add_u32 {s(S_T0)}, {s(S_T0)}, {s(S_LW)}")
            E(f"s_lshl_b32 {s(S_T0)}, {s(S_T0)}, 2\ns_add_u32 {s(S_T0)}, {s(S_T0)}, {s(S_HG)}\ns_mul_i32 {s(S_XB)}, {s(S_T0)}, {8*12288}\ns_add_u32 {s(S_XB)}, {s(S_XB)}, {WS_O}")
            E(f"s_lshl_b32 {s(S_KC)}, {s(S_J7)}, 1")
            E(f"s_and_b32 {s(S_T0)}, s2, 0xc7\ns_lshl_b32 {s(S_T0)}, {s(S_T0)}, 10\ns_add_u32 {s(S_T3)}, {s(S_T0)}, {WS_F}")
            E(f"v_and_b32 {v(LF)}, 7, {L}\nv_lshlrev_b32 {v(LF)}, 13, {v(LF)}\nv_lshrrev_b32 {v(L2)}, 3, {L}\nv_lshl_add_u32 {v(LF)}, {v(L2)}, 7, {v(LF)}")
        for t in late: write(t)
        if late:
            E("s_waitcnt lgkmcnt(0)"); st8["written"] = max(ws)
    assert not todo
    output_phase(E, vm, cfg)

def kernel(E, cfg):
    L = v(V_LANE)
    E.raw(f".globl {KN}\n.p2align 8\n.type {KN},@function\n{KN}:")
    E(f"s_cmp_ge_u32 s2, 256\ns_cbranch_scc1 L_end_k")
    E("s_load_dwordx16 s[4:19], s[0:1], 0\ns_load_dwordx8 s[20:27], s[0:1], 64\ns_load_dwordx2 s[28:29], s[0:1], 96")
    stamp(E, cfg, 0)
    E(f"v_lshrrev_b32 v2, 6, v0\nv_and_b32 {L}, 63, v0\nv_readfirstlane_b32 {s(S_WAVE)}, v2")
    E(f"s_bfe_u32 {s(S_BR)}, s2, 0x10002\ns_and_b32 {s(S_HG)}, s2, 3\ns_bfe_u32 {s(S_J7)}, s2, 0x30003\ns_lshr_b32 {s(S_P)}, s2, 6")
    E(f"s_lshl_b32 {s(S_NT)}, {s(S_P)}, 1\ns_add_u32 {s(S_NT)}, {s(S_NT)}, {s(S_J7)}\ns_and_b32 {s(S_NT)}, {s(S_NT)}, 7")
    E(f"s_mov_b32 {s(S_SPIN)}, 0x100000\ns_waitcnt lgkmcnt(0)")
    E(f"s_cmp_eq_u32 {s(S_BR)}, 0")
    for i in range(5): E(f"s_cselect_b64 {s(4+2*i,2)}, {s(4+2*i,2)}, {s(14+2*i,2)}")
    srd(E, SRD_S, 28, 1 << 28); srd(E, SRD_D, 26, 256)
    E(f"s_cmp_ge_u32 {s(S_WAVE)}, 4\ns_cbranch_scc1 L_k_loader")
    E(f"s_cmp_lg_u32 {s(S_WAVE)}, 0\ns_cbranch_scc1 L_noclear")
    E(f"v_lshlrev_b32 v2, 7, {L}\nv_mov_b32 v3, 0\ns_lshl_b32 {s(S_T0)}, s2, 10\ns_add_u32 {s(S_T0)}, {s(S_T0)}, {WS_F}")
    E(f"s_mov_b64 exec, 0xff\nbuffer_store_dword v3, v2, {s(SRD_S,4)}, {s(S_T0)} offen sc1\ns_mov_b64 exec, -1")
    E.label("L_noclear")
    a_addr_init(E, "0")
    E(f"s_mul_i32 {s(S_T0)}, {s(S_WAVE)}, 6144\ns_add_u32 {s(S_T0)}, {s(S_T0)}, 16384")
    E(f"v_and_b32 {v(TA)}, 15, {L}\nv_lshrrev_b32 {v(TB)}, 1, {v(TA)}\nv_lshrrev_b32 {v(TC)}, 4, {L}\nv_xor_b32 {v(TB)}, {v(TB)}, {v(TC)}\nv_lshlrev_b32 {v(TB)}, 4, {v(TB)}")
    E(f"v_lshl_add_u32 {v(TB)}, {v(TA)}, 7, {v(TB)}\nv_add_u32 {v(V_B)}, {s(S_T0)}, {v(TB)}\nv_xor_b32 {v(V_B+1)}, 64, {v(V_B)}")
    zero_acc(E)
    E(f"s_mov_b32 {s(S_PH)}, 0\ns_mov_b32 {s(S_KC)}, 16")
    E.label("L_gemm_entry")
    gemm(E)
    E(f"s_cmp_eq_u32 {s(S_PH)}, 1\ns_cbranch_scc1 L_final")
    st = E.state()
    stamp(E, cfg, 1)
    attention(E, cfg)
    E.set_state(st)
    E.label("L_final")
    final(E, cfg)
    E.set_state(([], []))
    loader(E, cfg)
    E.label("L_end_k")
    E("s_endpgm")

def build(cfg):
    out = ("; Fused Q projection, attention and output projection; one workgroup per CU\n"
           "; @launch grid=(256,1,1) block=(512,1,1) lds=163840\n"
           '.amdgcn_target "amdgcn-amd-amdhsa--gfx950"\n.text\n')
    E = Emitter(); kernel(E, cfg); out += E.text()
    out += ('.section .rodata,"a"\n'
            f".p2align 6\n.amdhsa_kernel {KN}\n  .amdhsa_next_free_vgpr 256\n  .amdhsa_next_free_sgpr 102\n  .amdhsa_accum_offset 256\n"
            "  .amdhsa_group_segment_fixed_size 0\n  .amdhsa_kernarg_size 104\n  .amdhsa_user_sgpr_count 2\n  .amdhsa_user_sgpr_kernarg_segment_ptr 1\n"
            "  .amdhsa_system_sgpr_workgroup_id_x 1\n.end_amdhsa_kernel\n")
    return out

def parse(args):
    kw = dict(a.split("=", 1) for a in args)
    for k in kw:
        if kw[k] in ("True", "False"): kw[k] = kw[k] == "True"
        elif kw[k].isdigit(): kw[k] = int(kw[k])
        elif kw[k]: kw[k] = " " + kw[k].replace("+", " ")
    return kw

if __name__ == "__main__":
    kw = parse(sys.argv[2:])
    tr = kw.pop("trace", False)
    txt = build(Cfg(**kw))
    if tr:
        from trace import add_trace
        txt = add_trace(txt, ["k"])
    open(sys.argv[1], "w").write(txt)
```

```python
import math, struct, sys
from emit import *

NAME = "concat_heads__mha_block_cached__gqa_block_cached__near_ridge"
KN = NAME + "_kernel"
SLOT = 40960
TILE = 32768
OWNW = 4 * TILE
WS_O, WS_P, WS_F, WS_T = 0, 16 << 20, 32 << 20, 64 << 20
C_SCALE = struct.unpack("<I", struct.pack("<f", math.log2(math.e) / math.sqrt(128.0)))[0]
THRESH = 0x47800000

SRD_X, SRD_W, SRD_K, SRD_V, SRD_S, SRD_D = 32, 36, 40, 44, 48, 72
S_WAVE, S_BR, S_HG, S_J7, S_P = 52, 53, 54, 55, 56
S_T0, S_T1, S_LW, S_CNT, S_PH, S_KC, S_WB, S_XB, S_DELTA, S_KVB, S_NT = 57, 58, 59, 60, 61, 62, 63, 64, 65, 66, 67
S_C = 68
S_MASK, S_CLS = 70, 71
S_M0W, S_M0X, S_T3, S_SPIN = 76, 77, 78, 79
S_TS = 80

V_LANE = 1
V_A, V_B, V_K, V_NM = 4, 12, 12, 16
V_L = [2, 28, 30]
V_F, V_ACC, V_Q, V_S = 32, 64, 160, 208
TA, TB, TC = 244, 245, 246

def acc(t, qt): return V_ACC + (t * 3 + qt) * 4
def frag(n): return V_F + (n % 8) * 4
def sreg(kt, qt): return V_S + (kt * 3 + qt) * 4
def qreg(qt, j): return V_Q + (qt * 4 + j) * 4
def breg(st, qt): return V_S + (st * 3 + qt) * 4
MF = "v_mfma_f32_16x16x32_bf16"

class Cfg:
    kv_flag = " nt"; w_flag = ""; x_flag = ""; wo_flag = ""; out_st = ""; o_st = " sc1"
    rot = 4; rwin = 16; rotp = "0,4,8,12"
    ntp = "0,2,4,6"
    hm = 8
    bs = "3,5,7,9,11/4,6,8,10,12/3,5,7,9,11/4,6,8,10,12"
    drip = "20201010102011111"
    nvr = 2; ntouch = 2
    cnt_at = 24
    flag0_at = 44; st_it = 1; flag1_it = 3
    lastm = False; wpre1 = 99; wfirst = True; psleep = 0
    fakekv = False; stamps = False; encode = -1
    def __init__(self, **kw):
        self.__dict__.update(kw)
        self.sched = [[int(x) for x in c.split(',') if x] for c in self.bs.split('/')]
        self.drips = (str(self.drip).split('/') * 4)[:4]

def srd(E, d, base, nbytes):
    E(f"s_mov_b32 {s(d)}, {s(base)}\ns_and_b32 {s(d+1)}, {s(base+1)}, 0xffff\ns_mov_b32 {s(d+2)}, {nbytes}\ns_mov_b32 {s(d+3)}, 0x20000")

def stamp(E, cfg, i):
    if cfg.stamps: E(f"s_memrealtime {s(S_TS+2*i,2)}")

def stamps_out(E, cfg, n):
    if not cfg.stamps: return
    E("s_waitcnt lgkmcnt(0)")
    if cfg.encode >= 0:
        E(f"s_sub_u32 {s(S_T0)}, {s(S_TS+2*cfg.encode)}, {s(S_TS)}\ns_lshl_b32 {s(S_T0)}, {s(S_T0)}, 2\ns_add_u32 {s(S_T0)}, {s(S_T0)}, 10000")
        E.label("L_enc")
        E(f"s_sleep 4\ns_memrealtime s[96:97]\ns_waitcnt lgkmcnt(0)\ns_sub_u32 s96, s96, {s(S_TS)}\ns_cmp_lt_u32 s96, {s(S_T0)}\ns_cbranch_scc1 L_enc")
        return
    E(f"s_lshl_b32 {s(S_T0)}, s2, 3\ns_add_u32 {s(S_T0)}, {s(S_T0)}, {s(S_WAVE)}\ns_lshl_b32 {s(S_T0)}, {s(S_T0)}, 7\ns_add_u32 {s(S_T0)}, {s(S_T0)}, {WS_T}")
    E(f"v_mov_b32 v2, 0")
    for i in range(n):
        E(f"v_mov_b32 v4, {s(S_TS+2*i)}\nv_mov_b32 v5, {s(S_TS+2*i+1)}")
        E(f"buffer_store_dwordx2 v[4:5], v2, {s(SRD_S,4)}, {s(S_T0)} offen offset:{8*i}")
        E("s_nop 1")

def by_p(E, dst, csv):
    tab = sum(int(x) << (8*i) for i, x in enumerate(csv.split(",")))
    E(f"s_lshl_b32 {s(dst)}, {s(S_P)}, 3\ns_lshr_b32 {s(dst)}, {tab}, {s(dst)}\ns_and_b32 {s(dst)}, {s(dst)}, 0xff")

def put(fill, i, *items): fill.setdefault(i, []).extend(items)

def a_addr_init(E, base_s, xor_s=None):
    L = v(V_LANE)
    E(f"v_lshrrev_b32 {v(TA)}, 2, {L}\nv_and_b32 {v(TB)}, 7, {v(TA)}\nv_lshlrev_b32 {v(TB)}, 5, {v(TB)}\nv_lshl_add_u32 {v(TB)}, {v(TA)}, 8, {v(TB)}")
    E(f"v_and_b32 {v(TC)}, 3, {L}\nv_lshl_add_u32 {v(TB)}, {v(TC)}, 3, {v(TB)}")
    E(f"v_xor_b32 {v(V_A)}, {xor_s}, {v(TB)}" if xor_s else f"v_add_u32 {v(V_A)}, {base_s}, {v(TB)}")
    for t in range(1, 8): E(f"v_xor_b32 {v(V_A+t)}, {t<<5}, {v(V_A)}")

def rd_a(n):
    st, t = (n >> 3) & 1, n & 7
    return [f"ds_read_b64_tr_b16 {v(frag(n),2)}, {v(V_A+t)} offset:{st*8192}",
            f"ds_read_b64_tr_b16 {v(frag(n)+2,2)}, {v(V_A+t)} offset:{st*8192+4096}"]
def rd_b(st): return [f"ds_read_b128 {v(breg(st,qt),4)}, {v(V_B+st)} offset:{qt*2048}" for qt in range(3)]
def rd_k(n): return [f"ds_read_b128 {v(frag(n),4)}, {v(V_K+(n&3))} offset:{(n>>2)*4096}"]

def flag_store(n):
    return ["s_mov_b64 exec, 1", f"s_waitcnt vmcnt({n})", f"buffer_store_dword v3, v2, {s(SRD_S,4)}, {s(S_XB)} offen sc1", "s_mov_b64 exec, -1"]

def gemm(E):
    E("s_barrier")
    b0 = rd_b(0)
    for n in range(6):
        for t in rd_a(n): E(t)
        if n < 3: E(b0[n])
    E(f"s_mov_b32 {s(S_CNT)}, 0\ns_mov_b32 {s(S_T1)}, {SLOT}")
    mf = [f"{MF} {v(acc(n&7,qt),4)}, {v(frag(n),4)}, {v(breg(n>>3,qt),4)}, {v(acc(n&7,qt),4)}" for n in range(16) for qt in range(3)]
    def body():
        fill = {}
        put(fill, 2, f"s_add_u32 {s(S_CNT)}, {s(S_CNT)}, 1", f"s_and_b32 {s(S_T0)}, {s(S_CNT)}, 3")
        put(fill, 5, f"s_cselect_b32 {s(S_DELTA)}, {s(S_T1)}, {(-3*SLOT) & 0xffffffff}")
        put(fill, 14, f"s_cmp_eq_u32 {s(S_CNT)}, {s(S_MASK)}", "s_cbranch_scc1 L_flag1", "L_flag1_ret:")
        put(fill, 29, "s_barrier")
        for n in range(16):
            a = rd_a(n + 6)
            put(fill, 3*n, a[0]); put(fill, 3*n+1, a[1])
        for k, t in enumerate(rd_b(1)): put(fill, 3*k+5, t)
        for k, t in enumerate(b0): put(fill, 3*k+32, t)
        add = lambda r: f"v_add_u32 {v(r)}, {s(S_DELTA)}, {v(r)}"
        for t in range(8): put(fill, 3*(t+3)+1, add(V_A+t))
        put(fill, 17, add(V_B)); put(fill, 20, add(V_B+1))
        interleave(E, mf, fill)
    E.loop("L_gemm", body, f"s_cmp_lt_u32 {s(S_CNT)}, {s(S_KC)}\ns_cbranch_scc1 L_gemm")
    E("s_waitcnt lgkmcnt(0)")

def zero_acc(E):
    for r in range(V_ACC, V_ACC + 96, 2): E(f"v_mov_b64 {v(r,2)}, 0")

def xlane(E, op, regs, tmp):
    for sw in ("v_permlane32_swap_b32", "v_permlane16_swap_b32"):
        for r, t in zip(regs, tmp): E(f"v_mov_b32 {v(t)}, {v(r)}")
        for r, t in zip(regs, tmp): E(f"{sw} {v(t)}, {v(r)}")
        for r, t in zip(regs, tmp): E(f"{op} {v(r)}, {v(r)}, {v(t)}")

SUM = [V_F, V_F + 2, V_F + 4]
def sum_ops(kts):
    out = []
    for kt in kts:
        for h in range(2):
            for qt in range(3):
                r = sreg(kt, qt)
                if kt == 0 and h == 0: continue
                if kt == 0: out.append(f"v_pk_add_f32 {v(SUM[qt],2)}, {v(r,2)}, {v(r+2,2)}")
                else: out.append(f"v_pk_add_f32 {v(SUM[qt],2)}, {v(SUM[qt],2)}, {v(r+2*h,2)}")
    return out
def cvt_ops(kts):
    return [f"v_cvt_pk_bf16_f32 {v(sreg(kt&2,qt)+2*(kt&1)+h)}, {v(sreg(kt,qt)+2*h)}, {v(sreg(kt,qt)+2*h+1)}" for kt in kts for h in range(2) for qt in range(3)]
def exp_ops(kt): return [f"v_exp_f32 {v(sreg(kt,qt)+i)}, {v(sreg(kt,qt)+i)}" for qt in range(3) for i in range(4)]
def qk_mfmas(cinit):
    return [f"{MF} {v(sreg(n>>2,qt),4)}, {v(frag(n),4)}, {v(qreg(qt,n&3),4)}, {v(sreg(n>>2,qt),4) if n&3 else cinit(qt)}" for n in range(16) for qt in range(3)]

def attention(E, cfg):
    L = v(V_LANE)
    E(f"s_cmp_lg_u32 {s(S_WAVE)}, 0\ns_cbranch_scc1 L_nocount")
    E(f"s_lshl_b32 {s(S_T1)}, {s(S_BR)}, 2\ns_add_u32 {s(S_T1)}, {s(S_T1)}, {s(S_P)}\ns_lshl_b32 {s(S_T1)}, {s(S_T1)}, 2")
    E(f"v_mov_b32 {v(TA+4)}, 0\nv_mov_b32 {v(TA+5)}, 1\ns_mov_b64 exec, 1\ns_waitcnt vmcnt(0)")
    E(f"buffer_atomic_add {v(TA+5)}, {v(TA+4)}, {s(SRD_D,4)}, {s(S_T1)} offen sc1\ns_mov_b64 exec, -1")
    E.label("L_nocount")
    E("s_nop 7")
    E(f"s_mov_b32 {s(S_C)}, {C_SCALE}\ns_mov_b32 {s(S_C+1)}, {C_SCALE}")
    E(f"s_lshr_b32 {s(S_T0)}, {s(S_WAVE)}, 1\ns_lshl_b32 {s(S_T0)}, {s(S_T0)}, 14")
    E(f"v_lshrrev_b32 {v(TA)}, 4, {L}\nv_and_b32 {v(TB)}, 1, {v(TA)}\nv_lshrrev_b32 {v(TA)}, 1, {v(TA)}\nv_lshl_or_b32 {v(TA)}, {v(TB)}, 1, {v(TA)}")
    E(f"v_and_b32 {v(TB)}, 15, {L}\nv_xor_b32 {v(TA)}, {v(TA)}, {v(TB)}\nv_lshlrev_b32 {v(TA)}, 4, {v(TA)}\nv_lshl_add_u32 {v(TA)}, {v(TB)}, 8, {v(TA)}\nv_add_u32 {v(V_K)}, {s(S_T0)}, {v(TA)}")
    for j in range(1, 4): E(f"v_xor_b32 {v(V_K+j)}, {j<<6}, {v(V_K)}")
    E(f"s_add_u32 {s(S_T0)}, {s(S_T0)}, {TILE}")
    a_addr_init(E, s(S_T0))
    E(f"s_lshl_b32 {s(S_KVB)}, {s(S_HG)}, 6\ns_xor_b32 {s(S_KVB)}, {s(S_KVB)}, {s(S_T0)}\ns_xor_b32 {s(S_KVB)}, {s(S_KVB)}, {OWNW ^ (2*TILE)}")
    LS = [sreg(1, 0), sreg(1, 1), sreg(1, 2)]
    for qt in range(3):
        E(f"v_mov_b32 {v(V_NM+4*qt)}, 0x7f800000\nv_mov_b64 {v(V_L[qt],2)}, 0")
    for j in range(4):
        for qt in range(3):
            q = qreg(qt, j)
            for e in range(2):
                a = acc(2*j+e, qt)
                for h in range(2): E(f"v_pk_mul_f32 {v(a+2*h,2)}, {v(a+2*h,2)}, {s(S_C,2)}")
            for e in range(2):
                a = acc(2*j+e, qt)
                E(f"v_cvt_pk_bf16_f32 {v(q+2*e)}, {v(a)}, {v(a+1)}\nv_cvt_pk_bf16_f32 {v(q+2*e+1)}, {v(a+2)}, {v(a+3)}")
    for qt in range(3):
        for j in range(4):
            q = qreg(qt, j)
            E(f"v_permlane16_swap_b32 {v(q)}, {v(q+2)}\nv_permlane16_swap_b32 {v(q+1)}, {v(q+3)}")
    E(f"s_mov_b32 {s(S_CNT)}, 0\ns_mov_b32 {s(S_DELTA)}, {2*TILE}\ns_mov_b32 {s(S_T3)}, {THRESH}")
    prek = sum([rd_k(n) for n in range(6)], [])
    E.label("L_exact")
    E("s_nop 7")
    for t in prek: E(t)
    fill = {}
    for n in range(10): put(fill, 3*n, *rd_k(n + 6))
    interleave(E, qk_mfmas(lambda qt: "0"), fill)
    MN = [V_F + 8, V_F + 10, V_F + 12]; AL = [V_F + 14, V_F + 16, V_F + 18]; TM = [V_F + 9, V_F + 11, V_F + 13]
    for kt in range(4):
        for h in range(2):
            for qt in range(3):
                src = f"-{v(V_NM+4*qt)}" if (kt == 0 and h == 0) else v(MN[qt])
                E(f"v_max3_f32 {v(MN[qt])}, {src}, {v(sreg(kt,qt)+2*h)}, {v(sreg(kt,qt)+2*h+1)}")
    xlane(E, "v_max_f32", MN, TM)
    for qt in range(3): E(f"v_sub_f32_e64 {v(AL[qt])}, -{v(V_NM+4*qt)}, {v(MN[qt])}")
    for qt in range(3): E(f"v_exp_f32 {v(AL[qt])}, {v(AL[qt])}")
    for qt in range(3):
        for i in range(4): E(f"v_sub_f32 {v(V_NM+4*qt+i)}, 0, {v(MN[qt])}")
    for kt in range(4):
        for qt in range(3):
            for h in range(2): E(f"v_pk_add_f32 {v(sreg(kt,qt)+2*h,2)}, {v(sreg(kt,qt)+2*h,2)}, {v(V_NM+4*qt,2)}")
    for kt in range(4):
        for t in exp_ops(kt): E(t)
    for qt in range(3):
        E(f"v_pk_mul_f32 {v(V_L[qt],2)}, {v(V_L[qt],2)}, {v(AL[qt],2)} op_sel_hi:[1,0]")
        for t in range(8):
            for h in range(2):
                r = acc(t, qt) + 2*h
                E(f"v_pk_mul_f32 {v(r,2)}, {v(r,2)}, {v(AL[qt],2)} op_sel_hi:[1,0]")
    for t in sum_ops(range(4)) + cvt_ops([0, 1]): E(t)
    E("s_branch L_join")
    def body():
        fill = {}
        for n in range(10): put(fill, 3*n, *rd_k(n + 6))
        ex = exp_ops(0) + exp_ops(1) + exp_ops(2)
        for k, t in enumerate(ex): put(fill, min(14 + k, 47), t)
        interleave(E, qk_mfmas(lambda qt: v(V_NM+4*qt, 4)), fill)
        for t in sum_ops([0, 1]) + cvt_ops([0, 1]) + exp_ops(3) + sum_ops([2, 3]): E(t)
        E(f"v_max3_f32 {v(V_F+6)}, {v(SUM[0])}, {v(SUM[0]+1)}, {v(SUM[1])}\nv_max3_f32 {v(V_F+7)}, {v(SUM[1]+1)}, {v(SUM[2])}, {v(SUM[2]+1)}")
        E(f"v_max_f32 {v(V_F+6)}, {v(V_F+6)}, {v(V_F+7)}\nv_cmp_lt_f32 vcc, {s(S_T3)}, {v(V_F+6)}\ns_nop 4\ns_cbranch_vccnz L_exact")
        E.label("L_join")
        for qt in range(3): E(f"v_pk_add_f32 {v(V_L[qt],2)}, {v(V_L[qt],2)}, {v(SUM[qt],2)}")
        E("s_barrier")
        for n in range(6):
            for t in rd_a(n): E(t)
        for t in cvt_ops([2, 3]): E(t)
        mf = [f"{MF} {v(acc(n&7,qt),4)}, {v(frag(n),4)}, {v(sreg(2*(n>>3),qt),4)}, {v(acc(n&7,qt),4)}" for n in range(16) for qt in range(3)]
        fill = {}
        for n in range(10):
            a = rd_a(n + 6)
            put(fill, 3*n, a[0]); put(fill, 3*n+1, a[1])
        late = []
        add = lambda r: f"v_xor_b32 {v(r)}, {s(S_DELTA)}, {v(r)}"
        for j in range(4): put(fill, 2 + 3*j, add(V_K+j))
        for t in range(8): put(fill, 3*(t+3)+1, f"v_xor_b32 {v(V_A+t)}, {s(S_WB)}, {v(V_A+t)}")
        put(fill, 2, f"s_add_u32 {s(S_CNT)}, {s(S_CNT)}, 1", f"s_cmp_lt_u32 {s(S_CNT)}, 8")
        put(fill, 5, f"s_cselect_b32 {s(S_WB)}, {s(S_DELTA)}, {s(S_KVB)}")
        red = [f"v_add_f32 {v(LS[qt])}, {v(V_L[qt])}, {v(V_L[qt]+1)}" for qt in range(3)]
        for sw in ("v_permlane32_swap_b32", "v_permlane16_swap_b32"):
            red += [f"v_mov_b32 {v(LS[qt]+1)}, {v(LS[qt])}" for qt in range(3)]
            red += [f"{sw} {v(LS[qt]+1)}, {v(LS[qt])}" for qt in range(3)]
            red += [f"v_add_f32 {v(LS[qt])}, {v(LS[qt])}, {v(LS[qt]+1)}" for qt in range(3)]
        red += [f"v_rcp_f32 {v(LS[qt])}, {v(LS[qt])}" for qt in range(3)]
        slots = [12, 14, 14, 15, 17, 17, 20, 23, 26, 27, 30, 31, 32, 32, 33, 34, 35, 37, 38, 38, 39, 40, 41, 43]
        for at, t in zip(slots, red): late.append((at, t))
        put(fill, 29, "s_barrier")
        for k, t in enumerate(prek): put(fill, 30 + 3*k, t)
        for at, t in late: put(fill, at, t)
        interleave(E, mf, fill)
    E.lds = [set(Ins(t).writes) for t in prek]
    E.loop("L_attn", body, f"s_cbranch_scc1 L_attn")
    E("s_waitcnt lgkmcnt(0)")
    stamp(E, cfg, 2)
    def rd_w(n):
        return [f"ds_read_b64_tr_b16 {v(frag(n)+2*e,2)}, {v(V_A+(n&7))} offset:{(n>>3)*8192 + e*4096}" for e in range(2)]
    for n in range(6):
        for t in rd_w(n): E(t)
    E(f"s_lshl_b32 {s(S_T0)}, {s(S_BR)}, 2\ns_add_u32 {s(S_T0)}, {s(S_T0)}, {s(S_P)}\ns_lshl_b32 {s(S_T0)}, {s(S_T0)}, 2\ns_add_u32 {s(S_T0)}, {s(S_T0)}, {s(S_WAVE)}")
    E(f"s_lshl_b32 {s(S_T0)}, {s(S_T0)}, 2\ns_add_u32 {s(S_T0)}, {s(S_T0)}, {s(S_HG)}\ns_lshl_b32 {s(S_T0)}, {s(S_T0)}, 3\ns_add_u32 {s(S_T0)}, {s(S_T0)}, {s(S_J7)}")
    E(f"s_mul_i32 {s(S_T0)}, {s(S_T0)}, 12288\ns_add_u32 {s(S_T0)}, {s(S_T0)}, {WS_O}")
    VO = V_NM + 6
    E(f"v_lshlrev_b32 {v(VO)}, 4, {L}\ns_add_u32 {s(S_WB)}, {s(S_T0)}, 4096\ns_add_u32 {s(S_T3)}, {s(S_T0)}, 8192")
    oreg = lambda j, qt: V_Q + (((j>>1)*3+qt)*2 + (j&1))*4
    def store(k): return f"buffer_store_dwordx4 {v(V_Q+4*k,4)}, {v(VO)}, {s(SRD_S,4)}, {s([S_T0, S_WB, S_T3][k//4])} offen offset:{1024*(k%4)}{cfg.o_st}"
    for jp in range(2):
        for qt in range(3):
            for jj in range(2):
                j = 2*jp + jj; d = oreg(j, qt)
                for e in range(2):
                    a = acc(2*j+e, qt)
                    for h in range(2): E(f"v_pk_mul_f32 {v(a+2*h,2)}, {v(a+2*h,2)}, {v(LS[qt],2)} op_sel_hi:[1,0]")
                for e in range(2):
                    a = acc(2*j+e, qt)
                    E(f"v_cvt_pk_bf16_f32 {v(d+2*e)}, {v(a)}, {v(a+1)}\nv_cvt_pk_bf16_f32 {v(d+2*e+1)}, {v(a+2)}, {v(a+3)}")
                if jp == 0: E(store(qt*2 + jj))
    stamp(E, cfg, 3)
    mf = [f"{MF} {v(acc(n&7,qt),4)}, {v(frag(n),4)}, {v(oreg(n>>3,qt),4)}, {v(acc(n&7,qt),4) if n >= 8 else 0}" for n in range(32) for qt in range(3)]
    fill = {}
    for n in range(26):
        a = rd_w(n + 6)
        put(fill, 3*n, a[0]); put(fill, 3*n+1, a[1])
    put(fill, 2, f"s_mul_i32 {s(S_T0)}, {s(S_WAVE)}, 6144", f"s_add_u32 {s(S_T0)}, {s(S_T0)}, 16384")
    put(fill, 5, f"v_lshl_add_u32 {v(V_B)}, {L}, 4, {s(S_T0)}")
    put(fill, 11, f"v_add_u32 {v(V_B+1)}, 1024, {v(V_B)}")
    put(fill, 3, f"s_lshl_b32 {s(S_XB)}, s2, 3", f"s_add_u32 {s(S_XB)}, {s(S_XB)}, {s(S_WAVE)}")
    put(fill, 4, f"s_lshl_b32 {s(S_XB)}, {s(S_XB)}, 7", f"s_add_u32 {s(S_XB)}, {s(S_XB)}, {WS_F}")
    put(fill, 6, f"v_mov_b32 v2, 0"); put(fill, 7, f"v_mov_b32 v3, 1")
    put(fill, 9, f"s_mov_b32 {s(S_PH)}, 1", f"s_mov_b32 {s(S_KC)}, 14")
    put(fill, 10, f"s_mov_b32 {s(S_MASK)}, {cfg.st_it or cfg.flag1_it}")
    for t in range(8): put(fill, 80 + t, f"v_xor_b32 {v(V_A+t)}, {OWNW}, {v(V_A+t)}")
    pos = []
    assert cfg.flag0_at < 92
    if cfg.stamps: put(fill, cfg.flag0_at, f"s_memrealtime {s(S_TS+16,2)}")
    put(fill, cfg.flag0_at, *flag_store(sum(1 for q in pos if q < cfg.flag0_at)))
    if cfg.stamps: put(fill, cfg.flag0_at, f"s_memrealtime {s(S_TS+18,2)}"); put(fill, 95, f"s_memrealtime {s(S_TS+20,2)}")
    for k in range(len(pos)): put(fill, pos[k], store(6 + k))
    put(fill, 94, "v_mov_b32 v3, 2")
    interleave(E, mf, fill)
    E("s_branch L_gemm_entry")
    E.label("L_flag1")
    if cfg.st_it:
        E(f"s_cmp_eq_u32 {s(S_CNT)}, {cfg.flag1_it}\ns_cbranch_scc1 L_flag1b")
        for k in range(6, 12): E(store(k))
        E(f"s_mov_b32 {s(S_MASK)}, {cfg.flag1_it}\ns_branch L_flag1_ret")
        E.label("L_flag1b")
    for t in flag_store(0): E(t)
    E("s_branch L_flag1_ret")

def final(E, cfg):
    L = v(V_LANE)
    stamp(E, cfg, 4)
    E(f"s_lshl_b32 {s(S_T0)}, {s(S_BR)}, 2\ns_add_u32 {s(S_T0)}, {s(S_T0)}, {s(S_P)}\ns_lshl_b32 {s(S_T0)}, {s(S_T0)}, 3\ns_add_u32 {s(S_T0)}, {s(S_T0)}, {s(S_NT)}")
    E(f"s_mul_i32 {s(S_T0)}, {s(S_T0)}, {4*3*12288}\ns_mul_i32 {s(S_T1)}, {s(S_WAVE)}, 3072\ns_add_u32 {s(S_T0)}, {s(S_T0)}, {s(S_T1)}\ns_add_u32 {s(S_XB)}, {s(S_T0)}, {WS_P}")
    E(f"v_lshlrev_b32 v2, 4, {L}")
    for k in range(1, 4):
        E(f"s_xor_b32 {s(S_T0)}, {s(S_HG)}, {k}\ns_mul_i32 {s(S_T0)}, {s(S_T0)}, {3*12288}\ns_add_u32 {s(S_T0)}, {s(S_T0)}, {(k-1)*12288}\ns_add_u32 {s(S_T0)}, {s(S_T0)}, {s(S_XB)}")
        for qt in range(3):
            d = V_Q + ((k-1)*3+qt)*4
            for e in range(2):
                a = acc(2*k+e, qt)
                E(f"v_cvt_pk_bf16_f32 {v(d+2*e)}, {v(a)}, {v(a+1)}\nv_cvt_pk_bf16_f32 {v(d+2*e+1)}, {v(a+2)}, {v(a+3)}")
            E(f"buffer_store_dwordx4 {v(d,4)}, v2, {s(SRD_S,4)}, {s(S_T0)} offen offset:{qt*1024} sc1")
    E(f"v_and_b32 v3, 3, {L}\nv_xor_b32 v3, s2, v3\nv_lshlrev_b32 v3, 10, v3")
    E(f"s_lshl_b32 {s(S_T1)}, {s(S_WAVE)}, 7\ns_add_u32 {s(S_T1)}, {s(S_T1)}, {WS_F + 512}")
    E(f"s_mul_i32 {s(S_T0)}, {s(S_HG)}, {3*12288}\ns_add_u32 {s(S_XB)}, {s(S_XB)}, {s(S_T0)}")
    E(f"v_mov_b32 v4, 1")
    srd(E, SRD_X, 24, 768*4096)
    E(f"s_lshl_b32 {s(S_T0)}, {s(S_P)}, 2\ns_add_u32 {s(S_T0)}, {s(S_T0)}, {s(S_WAVE)}\ns_mul_i32 {s(S_WB)}, {s(S_T0)}, {48*4096}")
    E(f"s_lshl_b32 {s(S_T0)}, {s(S_BR)}, 3\ns_add_u32 {s(S_T0)}, {s(S_T0)}, {s(S_NT)}\ns_lshl_b32 {s(S_T0)}, {s(S_T0)}, 2\ns_add_u32 {s(S_T0)}, {s(S_T0)}, {s(S_HG)}\ns_lshl_b32 {s(S_T0)}, {s(S_T0)}, 6\ns_add_u32 {s(S_WB)}, {s(S_WB)}, {s(S_T0)}")
    E(f"v_lshrrev_b32 v6, 4, {L}\nv_and_b32 v7, 1, v6\nv_lshrrev_b32 v6, 1, v6\nv_lshl_or_b32 v6, v7, 1, v6\nv_lshlrev_b32 v6, 4, v6\nv_and_b32 v7, 15, {L}\nv_lshl_add_u32 v6, v7, 12, v6")
    E("s_mov_b64 exec, 1\ns_waitcnt vmcnt(0)")
    E(f"buffer_store_dword v4, v3, {s(SRD_S,4)}, {s(S_T1)} offen sc1")
    stamp(E, cfg, 5)
    E("s_mov_b64 exec, 14")
    E.label("L_poll2")
    E(f"buffer_load_dword v5, v3, {s(SRD_S,4)}, {s(S_T1)} offen sc1\ns_waitcnt vmcnt(0)\nv_cmp_eq_u32 vcc, 0, v5\ns_nop 4\ns_cbranch_vccz L_poll2_done\ns_sleep 1\ns_sub_u32 {s(S_SPIN)}, {s(S_SPIN)}, 1\ns_cbranch_scc0 L_poll2")
    E.label("L_poll2_done")
    E("s_mov_b64 exec, -1")
    stamp(E, cfg, 6)
    for k in range(3):
        for qt in range(3):
            E(f"buffer_load_dwordx4 {v(V_S+(k*3+qt)*4,4)}, v2, {s(SRD_S,4)}, {s(S_XB)} offen offset:{qt*1024} sc1")
        if k < 2: E(f"s_add_u32 {s(S_XB)}, {s(S_XB)}, 12288")
    E(f"s_mov_b32 {s(S_T0)}, 0xffff0000")
    for k in range(3):
        for qt in range(3):
            E(f"s_waitcnt vmcnt({8-3*k-qt})")
            for i in range(4):
                w = V_S + (k*3+qt)*4 + i; t = V_F + 2*i
                E(f"v_lshlrev_b32 {v(t)}, 16, {v(w)}\nv_and_b32 {v(t+1)}, {s(S_T0)}, {v(w)}")
            for i in range(4):
                a = acc(i >> 1, qt) + 2*(i & 1)
                E(f"v_pk_add_f32 {v(a,2)}, {v(a,2)}, {v(V_F+2*i,2)}")
    for qt in range(3):
        d = V_F + 8 + 4*qt
        for e in range(2):
            a = acc(e, qt)
            E(f"v_cvt_pk_bf16_f32 {v(d+2*e)}, {v(a)}, {v(a+1)}\nv_cvt_pk_bf16_f32 {v(d+2*e+1)}, {v(a+2)}, {v(a+3)}")
    for qt in range(3):
        d = V_F + 8 + 4*qt
        E(f"v_permlane16_swap_b32 {v(d)}, {v(d+2)}\nv_permlane16_swap_b32 {v(d+1)}, {v(d+3)}")
    for qt in range(3):
        E(f"buffer_store_dwordx4 {v(V_F+8+4*qt,4)}, v6, {s(SRD_X,4)}, {s(S_WB)} offen{cfg.out_st}")
        if qt < 2: E(f"s_add_u32 {s(S_WB)}, {s(S_WB)}, {16*4096}")
    if cfg.stamps:
        E("s_waitcnt vmcnt(0)"); stamp(E, cfg, 7); stamps_out(E, cfg, 11)
    E("s_endpgm")

LW, LX, LK, LV, LL, LF, L0, L1, L2 = 4, 8, 14, 18, 20, 21, 22, 23, 24
NGRP = 7
def tile_reg(c, j): return 32 + (c % NGRP) * 32 + 4 * j

class Vm:
    def __init__(self, E): self.E = E; self.n = 0; self.mark = {}
    def op(self, text, tag=None):
        self.E(text); self.n += 1
        if tag is not None: self.mark[tag] = self.n
    def wait(self, tag, slack=0):
        self.E(f"s_waitcnt vmcnt({max(0, min(63, self.n - self.mark[tag] - slack))})")

def w_offsets(E, ldw, qproj):
    L = v(V_LANE)
    E(f"v_lshrrev_b32 {v(L0)}, 4, {L}\nv_and_b32 {v(L1)}, 15, {L}")
    if qproj:
        E(f"s_lshr_b32 {s(S_T0)}, {s(S_LW)}, 1\ns_lshl_b32 {s(S_T0)}, {s(S_T0)}, 5\ns_and_b32 {s(S_T1)}, {s(S_LW)}, 1\ns_lshl_b32 {s(S_T1)}, {s(S_T1)}, 2\ns_add_u32 {s(S_T0)}, {s(S_T0)}, {s(S_T1)}")
    else:
        E(f"s_lshl_b32 {s(S_T0)}, {s(S_LW)}, 4")
    step, sh = (8 if qproj else 4), int(math.log2(ldw))
    for j in range(2):
        E(f"v_or_b32 {v(L2)}, {j<<2}, {v(L0)}\nv_lshlrev_b32 {v(L2)}, 1, {v(L2)}\nv_xor_b32 {v(L2)}, {v(L2)}, {v(L1)}\nv_lshlrev_b32 {v(L2)}, 4, {v(L2)}")
        E(f"v_add_u32 {v(LW+j)}, {s(S_T0)}, {v(L0)}\nv_lshl_add_u32 {v(LW+j)}, {v(LW+j)}, {sh}, {v(L2)}")
    E(f"v_add_u32 {v(LW+1)}, {step*ldw - 1024}, {v(LW+1)}")
    for j in range(2): E(f"v_add_u32 {v(LW+2+j)}, {2*(step*ldw - 1024)}, {v(LW+j)}")

def w_row(E, ldw, kc, hm):
    if hm < 8:
        E(f"s_and_b32 {s(S_T0)}, {s(kc)}, {16 - 2*hm}\ns_mul_i32 {s(S_T0)}, {s(S_T0)}, 3\ns_add_u32 {s(S_T0)}, {s(S_T0)}, {s(kc)}\ns_mul_i32 {s(S_T0)}, {s(S_T0)}, {64*ldw}")
    else:
        E(f"s_mul_i32 {s(S_T0)}, {s(kc)}, {64*ldw}")
def issue_w(E, vm, st, ldw, flag, kc, lds=None, hm=8):
    w_row(E, ldw, kc, hm)
    E(f"s_add_u32 m0, {s(S_M0W)}, {(st%4)*SLOT if lds is None else lds}\ns_add_u32 {s(S_T0)}, {s(S_T0)}, {s(S_WB)}")
    for j in range(4): vm.op(f"buffer_load_dwordx4 {v(LW+j)}, {s(SRD_W,4)}, {s(S_T0)} offen offset:{1024*j}{flag} lds", ("W", st))
def issue_x(E, vm, st, xstep, srdx, flag, kc):
    E(f"s_mul_i32 {s(S_T1)}, {s(kc)}, {xstep}\ns_add_u32 m0, {s(S_M0X)}, {(st%4)*SLOT}\ns_add_u32 {s(S_T1)}, {s(S_T1)}, {s(S_XB)}")
    for j in range(6):
        if j == 4: E(f"s_add_u32 m0, {s(S_M0X)}, {(st%4)*SLOT + 4096}")
        vm.op(f"buffer_load_dwordx4 {v(LX+j)}, {s(srdx,4)}, {s(S_T1)} offen offset:{1024*(j&3)}{flag} lds", ("X", st))
def adv(E, kc): E(f"s_add_u32 {s(kc)}, {s(kc)}, 1\ns_and_b32 {s(kc)}, {s(kc)}, 15")

def v_load(E, vm, cfg, c, g, j):
    if j % 4 == 0: E(f"s_xor_b32 {s(S_T0)}, {s(S_KVB)}, {c*16384 + (j>>2)*4096}")
    vm.op(f"buffer_load_dwordx4 {v(tile_reg(g,j),4)}, {v(LV+(j&1))}, {s(SRD_V,4)}, {s(S_T0)} offen offset:{1024*(j&3)}{cfg.kv_flag}", ("V", c))
def w_touch(E, vm, cfg, half):
    E(f"s_add_u32 {s(S_KC)}, {s(S_J7)}, 1\ns_and_b32 {s(S_KC)}, {s(S_KC)}, 7\ns_lshl_b32 {s(S_KC)}, {s(S_KC)}, 1\ns_add_u32 {s(S_KC)}, {s(S_KC)}, {half}")
    w_row(E, 2048, S_KC, cfg.hm); E(f"s_add_u32 {s(S_T0)}, {s(S_T0)}, {s(S_WB)}")
    for j in range(4): vm.op(f"buffer_load_dwordx4 {v(tile_reg(4,j),4)}, {v(LW+j)}, {s(SRD_W,4)}, {s(S_T0)} offen offset:{1024*j}{cfg.wo_flag}")
def k_load(E, vm, cfg, c, j, first, count=True):
    if first or j == 0 or j == 4: E(f"s_xor_b32 {s(S_T0)}, {s(S_KVB)}, {c*16384 + (j>>2)*4096}")
    t = f"buffer_load_dwordx4 {v(tile_reg(c,j),4)}, {v(LK+(j&3))}, {s(SRD_K,4)}, {s(S_T0)} offen offset:{1024*(j&3)}{cfg.kv_flag}"
    if count: vm.op(t, ("K", c))
    else: E(t)
def v_tile(E, vm, cfg, c):
    for j in range(8):
        if j % 4 == 0: E(f"s_add_u32 m0, {s(S_DELTA)}, {(1 + 2*(c&1))*TILE + (j>>2)*4096}\ns_xor_b32 {s(S_T0)}, {s(S_KVB)}, {c*16384 + (j>>2)*4096}")
        vm.op(f"buffer_load_dwordx4 {v(LV+(j&1))}, {s(SRD_V,4)}, {s(S_T0)} offen offset:{1024*(j&3)}{cfg.kv_flag} lds", ("V", c))

def output_phase(E, vm, cfg):
    S_ORD = S_KVB
    for h in range(8):
        order = [(h + d) & 7 for d in range(1, 8)]
        if cfg.lastm: order = [x for x in order if x & 3 != 1] + [x for x in order if x & 3 == 1]
        tab = sum(x << (4*k) for k, x in enumerate(order))
        E(f"s_cmp_eq_u32 {s(S_J7)}, {h}\ns_cselect_b32 {s(S_ORD)}, {tab}, {s(S_ORD)}")
    def chunk(m):
        half, d = divmod(m, 7)
        E(f"s_bfe_u32 {s(S_CNT)}, {s(S_ORD)}, {(3 << 16) | (4*d)}\ns_lshl_b32 {s(S_KC)}, {s(S_CNT)}, 1")
        if half: E(f"s_add_u32 {s(S_KC)}, {s(S_KC)}, 1")
    def wpart(m): issue_w(E, vm, m, 2048, cfg.wo_flag, S_KC, hm=cfg.hm); vm.mark[m] = vm.n
    poll = f"buffer_load_dword {v(L2)}, {v(LF)}, {s(SRD_S,4)}, {s(S_T3)} offen sc1"
    def xpart(m):
        half, d = divmod(m, 7)
        if m == 0: E(f"s_mov_b32 {s(S_MASK)}, 0")
        if m == 7: E(f"v_cmp_lt_u32 vcc, 1, {v(L1)}\ns_nop 4\ns_and_b32 {s(S_MASK)}, vcc_lo, 0xff")
        E.label(f"L_p{m}")
        E(f"s_bitcmp1_b32 {s(S_MASK)}, {s(S_CNT)}\ns_cbranch_scc1 L_pd{m}")
        E(f"s_mov_b64 exec, 0xff\n{poll}\ns_waitcnt vmcnt(0)\nv_cmp_lt_u32 vcc, {half}, {v(L2)}\ns_mov_b64 exec, -1\ns_nop 2\ns_mov_b32 {s(S_MASK)}, vcc_lo")
        E(f"s_sub_u32 {s(S_SPIN)}, {s(S_SPIN)}, 1\ns_cbranch_scc0 L_p{m}\ns_mov_b32 {s(S_SPIN)}, 0")
        E.label(f"L_pd{m}")
        if m == 0: E.comment("MARK")
        if m == 6:
            E("s_mov_b64 exec, 0xff"); vm.op(poll.replace(v(L2), v(L1), 1), 5); E("s_mov_b64 exec, -1")
        issue_x(E, vm, m, 6144, SRD_S, " sc1", S_KC); vm.mark[m] = vm.n
    chunk(0); wpart(0)
    vm.wait(("W", 33)); E("s_barrier")
    chunk(1); wpart(1)
    for m in range(2): chunk(m); xpart(m)
    for m in range(14):
        vm.wait(m); E("s_barrier")
        if m + 2 < 14: chunk(m + 2); xpart(m + 2); wpart(m + 2)
        if m + 2 == cfg.wpre1: w_touch(E, vm, cfg, 1)
    E("s_barrier")

def loader(E, cfg):
    L = v(V_LANE)
    vm = Vm(E)
    E.label("L_k_loader")
    E(f"s_sub_u32 {s(S_LW)}, {s(S_WAVE)}, 4")
    srd(E, SRD_X, 4, 768*2048); srd(E, SRD_W, 10, 1024*8192); srd(E, SRD_K, 6, 1 << 25); srd(E, SRD_V, 8, 1 << 25)
    w_offsets(E, 8192, True)
    E(f"s_mul_i32 {s(S_KVB)}, {s(S_HG)}, {cfg.hm}\ns_add_u32 {s(S_KVB)}, {s(S_KVB)}, {s(S_J7)}")
    if cfg.hm < 8: E(f"s_and_b32 {s(S_T0)}, {s(S_J7)}, {8 - cfg.hm}\ns_mul_i32 {s(S_T0)}, {s(S_T0)}, 3\ns_add_u32 {s(S_KVB)}, {s(S_KVB)}, {s(S_T0)}")
    E(f"s_lshl_b32 {s(S_WB)}, {s(S_KVB)}, 8")
    def kv_setup():
        E(f"s_lshl_b32 {s(S_T0)}, {s(S_P)}, 1\ns_lshr_b32 {s(S_T1)}, {s(S_LW)}, 1\ns_add_u32 {s(S_T0)}, {s(S_T0)}, {s(S_T1)}\ns_lshl_b32 {s(S_T0)}, {s(S_T0)}, 5\ns_add_u32 {s(S_KVB)}, {s(S_KVB)}, {s(S_T0)}")
        if cfg.fakekv: E(f"s_mov_b32 {s(S_KVB)}, 0")
        E(f"s_lshl_b32 {s(S_KVB)}, {s(S_KVB)}, 17\ns_and_b32 {s(S_T0)}, {s(S_LW)}, 1\ns_lshl_b32 {s(S_T0)}, {s(S_T0)}, 13\ns_add_u32 {s(S_KVB)}, {s(S_KVB)}, {s(S_T0)}")
        E(f"s_lshl_b32 {s(S_T0)}, {s(S_J7)}, 2\ns_or_b32 {s(S_T0)}, {s(S_T0)}, {s(S_T1)}\ns_lshl_b32 {s(S_T0)}, {s(S_T0)}, 12\ns_xor_b32 {s(S_KVB)}, {s(S_KVB)}, {s(S_T0)}")
        for j in range(4):
            E(f"v_or_b32 {v(L2)}, {4*j}, {v(L0)}\nv_xor_b32 {v(L2)}, {v(L2)}, {v(L1)}\nv_lshlrev_b32 {v(L2)}, 4, {v(L2)}\nv_lshl_add_u32 {v(LK+j)}, {v(L0)}, 8, {v(L2)}")
    W = cfg.rwin
    by_p(E, S_CNT, cfg.rotp)
    E(f"s_mul_i32 {s(S_T0)}, {s(S_J7)}, {W//cfg.rot}\ns_add_u32 {s(S_CNT)}, {s(S_CNT)}, {s(S_T0)}")
    def setkc(st): E(f"s_add_u32 {s(S_KC)}, {s(S_CNT)}, {st}\ns_and_b32 {s(S_KC)}, {s(S_KC)}, {W-1}\ns_or_b32 {s(S_KC)}, {s(S_KC)}, {st & ~(W-1)}")
    setkc(0)
    E(f"s_lshl_b32 {s(S_M0W)}, {s(S_LW)}, 12\ns_mul_i32 {s(S_M0X)}, {s(S_LW)}, 6144\ns_add_u32 {s(S_M0X)}, {s(S_M0X)}, 16384")
    issue_w(E, vm, 0, 8192, cfg.w_flag, S_KC)
    E(f"s_mul_i32 {s(S_XB)}, {s(S_P)}, {192*2048}\ns_mul_i32 {s(S_T0)}, {s(S_LW)}, 48")
    for j in range(2):
        E(f"v_add_u32 {v(L2)}, {4*j}, {v(L0)}\nv_xor_b32 {v(L2)}, {v(L2)}, {L}\nv_and_b32 {v(L2)}, 7, {v(L2)}\nv_lshlrev_b32 {v(L2)}, 4, {v(L2)}")
        E(f"v_lshrrev_b32 {v(LX+j)}, 3, {L}\nv_add_u32 {v(LX+j)}, {s(S_T0)}, {v(LX+j)}\nv_lshl_add_u32 {v(LX+j)}, {v(LX+j)}, 11, {v(L2)}")
    for j in range(5, 0, -1): E(f"v_add_u32 {v(LX+j)}, {8*j*2048 - 1024*(j&3)}, {v(LX+(j&1))}")
    issue_x(E, vm, 0, 128, SRD_X, cfg.x_flag, S_KC)
    def qstage(st):
        setkc(st); issue_w(E, vm, st, 8192, cfg.w_flag, S_KC); issue_x(E, vm, st, 128, SRD_X, cfg.x_flag, S_KC)
    for j in range(2):
        E(f"v_or_b32 {v(L2)}, {4*j}, {v(L0)}\nv_lshlrev_b32 {v(L2)}, 1, {v(L2)}\nv_xor_b32 {v(L2)}, {v(L2)}, {v(L1)}\nv_lshlrev_b32 {v(L2)}, 4, {v(L2)}\nv_lshl_add_u32 {v(LV+j)}, {v(L0)}, 8, {v(L2)}")
    E(f"s_lshl_b32 {s(S_DELTA)}, {s(S_LW)}, 13\nv_lshl_add_u32 {v(LL)}, {L}, 4, {s(S_DELTA)}\nv_add_u32 {v(LL+6)}, {2*TILE}, {v(LL)}")
    kv_setup()
    E(f"s_and_b32 {s(S_PH)}, {s(S_J7)}, 3")
    qstage(1)
    for i in range(14):
        vm.wait(("X", i)); E("s_barrier")
        qstage(i + 2)
        for k in range(NGRP):
            m = sum(1 << c for c, lst in enumerate(cfg.sched) if k < len(lst) and lst[k] == i)
            if not m: continue
            E(f"s_bitcmp0_b32 {m}, {s(S_PH)}\ns_cbranch_scc1 L_nb{i}_{k}")
            for j in range(8): k_load(E, vm, cfg, k, j, False, count=False)
            E.label(f"L_nb{i}_{k}")
            vm.mark[("K", k)] = vm.n
    kinds = {}
    for c in range(4): kinds.setdefault((len(cfg.sched[c]), cfg.drips[c]), []).append(c)
    kinds = list(kinds.items())
    for q, (_, cs) in enumerate(kinds):
        if q: E(f"s_bitcmp1_b32 {sum(1 << c for c in cs)}, {s(S_PH)}\ns_cbranch_scc1 L_att{q}")
    n0, m0 = vm.n, dict(vm.mark)
    young = 63
    for q, ((nb, drip), _) in enumerate(kinds):
        E.label(f"L_att{q}")
        vm.n, vm.mark = n0, dict(m0)
        young = min(young, attention_loads(E, vm, cfg, nb, drip, q))
        if q + 1 < len(kinds): E("s_branch L_attdone")
    E.label("L_attdone")
    vm.mark[("W", 33)] = vm.n - young
    E("s_barrier")
    output_phase(E, vm, cfg)

def attention_loads(E, vm, cfg, nb, drip, q):
    L = v(V_LANE)
    v0 = 8 - cfg.nvr
    todo = [("K", c, h) for c in range(nb, 8) for h in range(2)] + [("V", c, h) for c in range(v0, 8) for h in range(2)]
    todo += [("W", 0, 0), ("W", 1, 0)] + [("T", h, 0) for h in range(cfg.ntouch)]
    drip = [int(x) for x in drip]
    written = -1
    def take():
        kind, c, h = todo.pop(0)
        if kind == "K":
            assert c - NGRP <= written
            for j in range(4*h, 4*h + 4): k_load(E, vm, cfg, c, j, False)
        elif kind == "V":
            assert 8 + c - v0 - NGRP <= written
            for j in range(4*h, 4*h + 4): v_load(E, vm, cfg, c, 8 + c - v0, j)
        elif kind == "W":
            issue_w(E, vm, 32 + c, 2048, cfg.wo_flag, S_KC, OWNW + c*16384, cfg.hm); adv(E, S_KC)
        else:
            assert written >= 4
            w_touch(E, vm, cfg, c)
    def write(kind, c, js):
        while any(k == kind and q <= c for k, q, _ in todo): take()
        vm.wait((kind, c))
        g = c if kind == "K" else 8 + c - v0
        for j in js: E(f"ds_write_b128 {v(LL+6 if c & 1 else LL)}, {v(tile_reg(g,j),4)} offset:{1024*j + (TILE if kind == 'V' else 0)}")
    for i in range(14, 31):
        if i < 16: vm.wait(("X", i))
        elif i % 2 and (i - 17)//2 < v0: vm.wait(("V", (i - 17)//2))
        E("s_barrier")
        if i % 2 and (i - 15)//2 < v0: v_tile(E, vm, cfg, (i - 15)//2)
        if i == cfg.cnt_at:
            E(f"s_lshl_b32 {s(S_T0)}, {s(S_BR)}, 2\ns_add_u32 {s(S_T0)}, {s(S_T0)}, {s(S_P)}\ns_lshl_b32 {s(S_CLS)}, {s(S_T0)}, 2\nv_mov_b32 {v(LF+6)}, 0")
            vm.op(f"buffer_load_dword {v(LF+4)}, {v(LF+6)}, {s(SRD_D,4)}, {s(S_CLS)} offen sc1", "cnt")
        if i == 16:
            srd(E, SRD_W, 12, 4096*2048)
            w_offsets(E, 2048, False)
            for j in range(6):
                E(f"v_lshlrev_b32 {v(LX+j)}, 4, {L}")
                if j >= 4: E(f"v_add_u32 {v(LX+j)}, 4096, {v(LX+j)}")
            E(f"s_mul_i32 {s(S_WB)}, {s(S_HG)}, {cfg.hm*128*2048}\ns_lshl_b32 {s(S_T0)}, {s(S_NT)}, 8\ns_add_u32 {s(S_WB)}, {s(S_WB)}, {s(S_T0)}")
            E(f"s_lshl_b32 {s(S_T0)}, {s(S_BR)}, 2\ns_add_u32 {s(S_T0)}, {s(S_T0)}, {s(S_P)}\ns_lshl_b32 {s(S_T0)}, {s(S_T0)}, 2\ns_add_u32 {s(S_T0)}, {s(S_T0)}, {s(S_LW)}")
            E(f"s_lshl_b32 {s(S_T0)}, {s(S_T0)}, 2\ns_add_u32 {s(S_T0)}, {s(S_T0)}, {s(S_HG)}\ns_mul_i32 {s(S_XB)}, {s(S_T0)}, {8*12288}\ns_add_u32 {s(S_XB)}, {s(S_XB)}, {WS_O}")
            E(f"s_lshl_b32 {s(S_KC)}, {s(S_J7)}, 1")
            E(f"s_and_b32 {s(S_T0)}, s2, 0xc7\ns_lshl_b32 {s(S_T0)}, {s(S_T0)}, 3\ns_add_u32 {s(S_T0)}, {s(S_T0)}, {s(S_LW)}\ns_lshl_b32 {s(S_T0)}, {s(S_T0)}, 7\ns_add_u32 {s(S_T3)}, {s(S_T0)}, {WS_F}")
            E(f"v_and_b32 {v(LF)}, 7, {L}\nv_lshlrev_b32 {v(LF)}, 13, {v(LF)}")
        wr = []
        if i == 14 and nb: wr.append(("K", 0, range(4)))
        if i == 15: wr.append(("K", 0, range(4 if nb else 0, 8)))
        if i >= 16 and i % 2 == 0 and (i - 14)//2 < 8: wr.append(("K", (i - 14)//2, range(8)))
        if i % 2 and (i - 15)//2 >= v0: wr.append(("V", (i - 15)//2, range(4)))
        if i % 2 == 0 and (i - 16)//2 >= v0: wr.insert(0, ("V", (i - 16)//2, range(4, 8)))
        if cfg.wfirst and i > 14:
            for w in wr: write(*w)
        for _ in range(drip[i - 14]):
            if todo and (todo[0][0] in "KV" or i >= 18): take()
        if not (cfg.wfirst and i > 14):
            for w in wr: write(*w)
        if wr and i != 14:
            E("s_waitcnt lgkmcnt(0)")
            written = max([written] + [c for k, c, _ in wr if k == "K"])
        if i == cfg.cnt_at + 2:
            vm.wait("cnt")
            E.label(f"L_cnt{q}")
            E(f"v_readfirstlane_b32 {s(S_T0)}, {v(LF+4)}\ns_cmp_ge_u32 {s(S_T0)}, 32\ns_cbranch_scc1 L_cnt_done{q}")
            E(f"s_sleep 2\nbuffer_load_dword {v(LF+4)}, {v(LF+6)}, {s(SRD_D,4)}, {s(S_CLS)} offen sc1\ns_waitcnt vmcnt(0)\ns_sub_u32 {s(S_SPIN)}, {s(S_SPIN)}, 1\ns_cbranch_scc0 L_cnt{q}\ns_mov_b32 {s(S_SPIN)}, 0")
            E.label(f"L_cnt_done{q}")
    while todo: take()
    if v0 == 8: vm.wait(("V", 7))
    return vm.n - vm.mark[("W", 33)]

def kernel(E, cfg):
    L = v(V_LANE)
    E.raw(f".globl {KN}\n.p2align 8\n.type {KN},@function\n{KN}:")
    E(f"s_cmp_ge_u32 s2, 256\ns_cbranch_scc1 L_end_k")
    E("s_load_dwordx16 s[4:19], s[0:1], 0\ns_load_dwordx8 s[20:27], s[0:1], 64\ns_load_dwordx2 s[28:29], s[0:1], 96")
    stamp(E, cfg, 0)
    E(f"v_lshrrev_b32 v2, 6, v0\nv_and_b32 {L}, 63, v0\nv_readfirstlane_b32 {s(S_WAVE)}, v2")
    E(f"s_bfe_u32 {s(S_BR)}, s2, 0x10002\ns_and_b32 {s(S_HG)}, s2, 3\ns_bfe_u32 {s(S_J7)}, s2, 0x30003\ns_lshr_b32 {s(S_P)}, s2, 6")
    by_p(E, S_NT, cfg.ntp)
    E(f"s_add_u32 {s(S_NT)}, {s(S_NT)}, {s(S_J7)}\ns_and_b32 {s(S_NT)}, {s(S_NT)}, 7")
    E(f"s_mov_b32 {s(S_SPIN)}, 0x100000\ns_waitcnt lgkmcnt(0)")
    E(f"s_cmp_eq_u32 {s(S_BR)}, 0")
    for i in range(5): E(f"s_cselect_b64 {s(4+2*i,2)}, {s(4+2*i,2)}, {s(14+2*i,2)}")
    srd(E, SRD_S, 28, 1 << 28); srd(E, SRD_D, 26, 256)
    E(f"s_cmp_ge_u32 {s(S_WAVE)}, 4\ns_cbranch_scc1 L_k_loader")
    E(f"s_cmp_lg_u32 {s(S_WAVE)}, 0\ns_cbranch_scc1 L_noclear")
    E(f"v_lshlrev_b32 v2, 7, {L}\nv_mov_b32 v3, 0\ns_lshl_b32 {s(S_T0)}, s2, 10\ns_add_u32 {s(S_T0)}, {s(S_T0)}, {WS_F}")
    E(f"s_mov_b64 exec, 0xff\nbuffer_store_dword v3, v2, {s(SRD_S,4)}, {s(S_T0)} offen sc1\ns_mov_b64 exec, -1")
    E.label("L_noclear")
    a_addr_init(E, "0")
    E(f"s_mul_i32 {s(S_T0)}, {s(S_WAVE)}, 6144\ns_add_u32 {s(S_T0)}, {s(S_T0)}, 16384")
    E(f"v_and_b32 {v(TA)}, 15, {L}\nv_lshrrev_b32 {v(TB)}, 1, {v(TA)}\nv_lshrrev_b32 {v(TC)}, 4, {L}\nv_xor_b32 {v(TB)}, {v(TB)}, {v(TC)}\nv_lshlrev_b32 {v(TB)}, 4, {v(TB)}")
    E(f"v_lshl_add_u32 {v(TB)}, {v(TA)}, 7, {v(TB)}\nv_add_u32 {v(V_B)}, {s(S_T0)}, {v(TB)}\nv_xor_b32 {v(V_B+1)}, 64, {v(V_B)}")
    zero_acc(E)
    E(f"s_mov_b32 {s(S_PH)}, 0\ns_mov_b32 {s(S_KC)}, 16\ns_mov_b32 {s(S_MASK)}, 99\ns_mov_b32 {s(S_XB)}, {WS_T}\nv_mov_b32 v2, 0\nv_mov_b32 v3, 0\nv_mov_b32 {v(V_NM+6)}, 0")
    E.label("L_gemm_entry")
    gemm(E)
    E(f"s_cmp_eq_u32 {s(S_PH)}, 1\ns_cbranch_scc1 L_final")
    st = E.state()
    stamp(E, cfg, 1)
    attention(E, cfg)
    E.set_state(st)
    E.label("L_final")
    final(E, cfg)
    E.set_state(([], []))
    loader(E, cfg)
    E.label("L_end_k")
    E("s_endpgm")

def build(cfg):
    out = ("; Fused Q projection, attention and output projection; one workgroup per CU\n"
           "; @launch grid=(256,1,1) block=(512,1,1) lds=163840\n"
           '.amdgcn_target "amdgcn-amd-amdhsa--gfx950"\n.text\n')
    E = Emitter(); kernel(E, cfg); out += E.text()
    out += ('.section .rodata,"a"\n'
            f".p2align 6\n.amdhsa_kernel {KN}\n  .amdhsa_next_free_vgpr 256\n  .amdhsa_next_free_sgpr 102\n  .amdhsa_accum_offset 256\n"
            "  .amdhsa_group_segment_fixed_size 0\n  .amdhsa_kernarg_size 104\n  .amdhsa_user_sgpr_count 2\n  .amdhsa_user_sgpr_kernarg_segment_ptr 1\n"
            "  .amdhsa_system_sgpr_workgroup_id_x 1\n.end_amdhsa_kernel\n")
    return out

def parse(args):
    kw = dict(a.split("=", 1) for a in args)
    for k in kw:
        if kw[k] in ("True", "False"): kw[k] = kw[k] == "True"
        elif kw[k].isdigit() and k != "drip": kw[k] = int(kw[k])
        elif kw[k] and k not in ("bs", "drip", "rotp", "ntp"): kw[k] = " " + kw[k].replace("+", " ")
    return kw

if __name__ == "__main__":
    kw = parse(sys.argv[2:])
    tr = kw.pop("trace", False)
    txt = build(Cfg(**kw))
    if tr:
        from trace import add_trace
        txt = add_trace(txt, ["k"])
    open(sys.argv[1], "w").write(txt)
```
